```python
import torch

def _softmax(x, axis=-1):
    return torch.softmax(x, dim=axis)
def _gelu(x):
    return torch.nn.functional.gelu(x, approximate="tanh")
def _silu(x):
    return torch.nn.functional.silu(x)
def _sigmoid(x):
    return torch.sigmoid(x)
def _layernorm(x, axis=-1, eps=1e-5):
    m = x.mean(dim=axis, keepdim=True)
    v = x.var(dim=axis, keepdim=True, unbiased=False)
    return (x - m) / torch.sqrt(v + eps)
def _scatter_add(tgt, idx, src, axis=0):
    return tgt.clone().index_add_(axis, idx, src)
def _segment_sum(src, seg, n):
    out = torch.zeros((n,) + src.shape[1:], dtype=src.dtype)
    return out.index_add_(0, seg, src)
def _pad(x, pw):
    flat = tuple(v for pair in reversed(pw) for v in pair)
    return torch.nn.functional.pad(x, flat)

kernel_name = 'recurrent_scan__mha_block_cached__dense_activation_gelu__decode'

def setup_inputs():

    _w = (lambda a: (lambda t: t.to(torch.bfloat16) if t.is_floating_point() else t)(torch.as_tensor(a)))
    def _A_setup():
        B, Sq, D = 1, 1, 640
        H, Sk, Dh = 32, 32768, 192
        return {
            "x": _w((lambda *s: torch.randn(*s, dtype=torch.bfloat16) * 0.4)(B, Sq, D)),
            "k_cache": _w((lambda *s: torch.randn(*s, dtype=torch.bfloat16) * 1.6)(B, H, Sk, Dh)),
            "v_cache": _w((lambda *s: torch.randn(*s, dtype=torch.bfloat16) * 1.6)(B, H, Sk, Dh)),
            "wq": _w((lambda *s: torch.randn(*s, dtype=torch.bfloat16) * 1.6)(D, H * Dh) * (D ** -0.5)),
            "wo": _w((lambda *s: torch.randn(*s, dtype=torch.bfloat16) * 1.6)(H * Dh, D) * ((H * Dh) ** -0.5)),
        }
    _A_in = _A_setup()

    def _B_setup():
        B, S, D, F = 1, 1, 640, 1536
        return {
            "x": _w((lambda *s: torch.randn(*s, dtype=torch.bfloat16) * 0.4)(B, S, D)),
            "w1": _w((lambda *s: torch.randn(*s, dtype=torch.bfloat16) * 1.6)(D, F) * (D ** -0.5)),
            "b1": _w((lambda *s: torch.randn(*s, dtype=torch.bfloat16) * 1.6)(F) * 0.01),
            "w2": _w((lambda *s: torch.randn(*s, dtype=torch.bfloat16) * 1.6)(F, D) * (F ** -0.5)),
            "b2": _w((lambda *s: torch.randn(*s, dtype=torch.bfloat16) * 1.6)(D) * 0.01),
        }
    _B_in = _B_setup()

    return {
        "A_x": _A_in["x"],
        "A_k_cache": _A_in["k_cache"],
        "A_v_cache": _A_in["v_cache"],
        "A_wq": _A_in["wq"],
        "A_wo": _A_in["wo"],
        "B_x": _B_in["x"],
        "B_w1": _B_in["w1"],
        "B_b1": _B_in["b1"],
        "B_w2": _B_in["w2"],
        "B_b2": _B_in["b2"],
    }

def reference(A_x, A_k_cache, A_v_cache, A_wq, A_wo, B_x, B_w1, B_b1, B_w2, B_b2):
    def _A_ref(x, k_cache, v_cache, wq, wo):
        B, Sq, D = x.shape
        H, Dh = 32, 192
        q = (lambda x, *d: x.permute(*d))((x @ wq).reshape(B, Sq, H, Dh), 0, 2, 1, 3)
        scores = torch.einsum("bhqd,bhkd->bhqk", q, k_cache) * (Dh ** -0.5)
        p = _softmax(scores, axis=-1)
        o = torch.einsum("bhqk,bhkd->bhqd", p, v_cache)
        return (lambda x, *d: x.permute(*d))(o, 0, 2, 1, 3).reshape(B, Sq, H * Dh) @ wo

    def _B_ref(x, w1, b1, w2, b2):
        h = torch.einsum("bsd,df->bsf", x, w1) + b1
        h = _gelu(h)
        return torch.einsum("bsf,fd->bsd", h, w2) + b2

    x = A_x
    xn = _layernorm(x, axis=-1)
    s = _A_ref(xn, A_k_cache, A_v_cache, A_wq, A_wo)
    g = _silu(_B_ref(xn, B_w1, B_b1, B_w2, B_b2))
    return x + s * g
```

```python
import sys, os, struct, math

NAME = "recurrent_scan__mha_block_cached__dense_activation_gelu__decode"
OUT = sys.argv[1] if len(sys.argv) > 1 else f"cdna_kernels/{NAME}.s"
STAMP = os.environ.get("STAMP", "") == "1"
NTFLAG = os.environ.get("NTFLAG", " nt")

L = []
def e(s=""):
    L.append("    " + s if s and not s.endswith(":") else s)
def c(s):
    L.append("    ; " + s)
def nop(n):
    e(f"s_nop {n}")
def vr(a, n):
    return f"v[{a}:{a+n-1}]"
def sr(a, n):
    return f"s[{a}:{a+n-1}]"
def f2h(x):
    return hex(struct.unpack("<I", struct.pack("<f", x))[0])

WS_Q = 0
WS_H = 16384
WS_CNT = 32768
WS_P = 65536
WS_Y = 393216
WS_Z = 524288
WS_BYTES = 8 << 20

LOG2E = 0x3fb8aa3b
SCALE = 0x3d93cd3a

header = f"""; Kernarg layout for this problem (104 bytes, ptrs only, base s[0:1]):
; @launch kernel=k1_proj_kernel grid=(240,1,1) block=(256,1,1) lds=12288
; @launch kernel=k2_attn_kernel grid=(256,1,1) block=(512,1,1) lds=8192
; @launch kernel=k3_out_kernel grid=(256,1,1) block=(256,1,1) lds=20480
; @launch kernel=k4_fin_kernel grid=(20,1,1) block=(256,1,1) lds=2048
.amdgcn_target "amdgcn-amd-amdhsa--gfx950"
.text
"""

def kstart(name):
    L.append(f".globl {name}")
    L.append(".p2align 8")
    L.append(f".type {name},@function")
    L.append(f"{name}:")

def srd(d, lo, hi, nbytes):
    e(f"s_mov_b32 s{d}, s{lo}")
    e(f"s_and_b32 s{d+1}, s{hi}, 0xffff")
    e(f"s_mov_b32 s{d+2}, {nbytes}")
    e(f"s_mov_b32 s{d+3}, 0x00020000")

def srd_off(d, lo, hi, soff, nbytes):
    e(f"s_add_u32 s{d}, s{lo}, s{soff}")
    e(f"s_addc_u32 s{d+1}, s{hi}, 0")
    e(f"s_and_b32 s{d+1}, s{d+1}, 0xffff")
    e(f"s_mov_b32 s{d+2}, {nbytes}")
    e(f"s_mov_b32 s{d+3}, 0x00020000")

def dpp(op, d, a, b, ctrl):
    e(f"{op}_dpp v{d}, v{a}, v{b} {ctrl} row_mask:0xf bank_mask:0xf")

def wave_allreduce(op, v, tmp, levels):
    for lv in levels:
        nop(1)
        if lv == 1:
            dpp(op, v, v, v, "quad_perm:[1,0,3,2]")
        elif lv == 2:
            dpp(op, v, v, v, "quad_perm:[2,3,0,1]")
        elif lv == 4:
            dpp(op, v, v, v, "row_half_mirror")
        elif lv == 8:
            dpp(op, v, v, v, "row_ror:8")
        elif lv == 16:
            e(f"v_mov_b32 v{tmp}, v{v}")
            nop(1)
            e(f"v_permlane16_swap_b32 v{v}, v{tmp}")
            e(f"{op} v{v}, v{v}, v{tmp}")
        elif lv == 32:
            e(f"v_mov_b32 v{tmp}, v{v}")
            nop(1)
            e(f"v_permlane32_swap_b32 v{v}, v{tmp}")
            e(f"{op} v{v}, v{v}, v{tmp}")

def reduce_hi(regs, extra_ror=(8,)):
    n = len(regs)
    h = n // 2
    nop(1)
    for i in range(h):
        e(f"v_permlane32_swap_b32 v{regs[i]}, v{regs[i+h]}")
    for i in range(h):
        e(f"v_add_f32 v{regs[i]}, v{regs[i]}, v{regs[i+h]}")
    q = n // 4
    nop(1)
    for i in range(q):
        e(f"v_permlane16_swap_b32 v{regs[i]}, v{regs[i+q]}")
    for i in range(q):
        e(f"v_add_f32 v{regs[i]}, v{regs[i]}, v{regs[i+q]}")
    for ror in extra_ror:
        nop(1)
        for i in range(q):
            dpp("v_add_f32", regs[i], regs[i], regs[i], f"row_ror:{ror}")

def bf16_round(v_list, tmp):
    for i in range(0, len(v_list), 2):
        a = v_list[i]
        b = v_list[i + 1] if i + 1 < len(v_list) else v_list[i]
        e(f"v_cvt_pk_bf16_f32 v{tmp}, v{a}, v{b}")
        e(f"v_lshlrev_b32 v{a}, 16, v{tmp}")
        if b != a:
            e(f"v_and_b32 v{b}, 0xffff0000, v{tmp}")

L.append(header)

kstart("k1_proj_kernel")
e("s_cmp_ge_u32 s2, 240")
e("s_cbranch_scc1 L_k1_exit")
e("s_load_dwordx2 s[4:5], s[0:1], 0")
e("s_load_dwordx2 s[6:7], s[0:1], 24")
e("s_load_dwordx4 s[8:11], s[0:1], 48")
e("s_load_dwordx2 s[12:13], s[0:1], 96")
e("v_and_b32 v1, 63, v0")
e("v_lshrrev_b32 v2, 6, v0")
nop(0)
e("v_readfirstlane_b32 s14, v2")
e("v_and_b32 v3, 3, v0")
e("v_lshrrev_b32 v4, 2, v0")
e("v_lshlrev_b32 v5, 2, v1")
e("s_waitcnt lgkmcnt(0)")
srd(16, 4, 5, 1280)
srd(28, 12, 13, WS_BYTES)
srd(32, 10, 11, 3072)
e("s_cmp_ge_u32 s2, 192")
e("s_cbranch_scc1 L_k1_w1")
srd(20, 6, 7, 640 * 12288)
e("s_mov_b32 s24, 12288")
e("s_lshl_b32 s25, s2, 6")
e("s_branch L_k1_go")
e("L_k1_w1:")
srd(20, 8, 9, 640 * 3072)
e("s_mov_b32 s24, 3072")
e("s_sub_u32 s25, s2, 192")
e("s_lshl_b32 s25, s25, 6")
e("L_k1_go:")
for j in range(5):
    e(f"buffer_load_dword v{8+j}, v5, s[16:19], 0 offen offset:{j*256}")
e("v_mul_lo_u32 v6, v4, s24")
e("v_lshl_add_u32 v6, v3, 4, v6")
e("s_lshl_b32 s26, s24, 6")
e("s_mov_b32 s27, s25")
for p in range(10):
    e(f"buffer_load_dwordx4 {vr(40+4*p,4)}, v6, s[20:23], s27 offen")
    if p < 9:
        e("s_add_u32 s27, s27, s26")
e("v_lshlrev_b32 v7, 1, v0")
e("buffer_load_ushort v38, v7, s[32:35], s25 offen")
c("layernorm")
e("s_waitcnt vmcnt(11)")
X = 16
for j in range(5):
    e(f"v_lshlrev_b32 v{X+2*j}, 16, v{8+j}")
    e(f"v_and_b32 v{X+2*j+1}, 0xffff0000, v{8+j}")
e(f"v_add_f32 v30, v{X}, v{X+1}")
for j in range(2, 10):
    e(f"v_add_f32 v30, v30, v{X+j}")
wave_allreduce("v_add_f32", 30, 31, [1, 2, 4, 8, 16, 32])
e("v_mul_f32 v30, 0x3acccccd, v30")
e("v_mov_b32 v31, 0")
for j in range(10):
    e(f"v_sub_f32 v32, v{X+j}, v30")
    e("v_fmac_f32 v31, v32, v32")
wave_allreduce("v_add_f32", 31, 32, [1, 2, 4, 8, 16, 32])
e("v_mul_f32 v31, 0x3acccccd, v31")
bf16_round([30, 31], 32)
e("v_add_f32 v31, 0x3727c5ac, v31")
bf16_round([31], 32)
e("v_sqrt_f32 v31, v31")
nop(0)
bf16_round([31], 32)
e("v_rcp_f32 v33, v31")
for j in range(10):
    e(f"v_sub_f32 v{X+j}, v{X+j}, v30")
bf16_round([X + j for j in range(10)], 32)
for j in range(10):
    e(f"v_mul_f32 v32, v{X+j}, v33")
    e(f"v_fma_f32 v34, -v32, v31, v{X+j}")
    e(f"v_fma_f32 v{X+j}, v34, v33, v32")
bf16_round([X + j for j in range(10)], 32)
e("s_mul_i32 s15, s14, 2560")
e("v_lshlrev_b32 v32, 3, v1")
e("v_add_u32 v32, s15, v32")
for j in range(5):
    e(f"ds_write_b64 v32, {vr(X+2*j,2)} offset:{j*512}")
e("v_lshlrev_b32 v33, 2, v4")
e("v_add_u32 v33, s15, v33")
e("s_waitcnt lgkmcnt(0)")
for p in range(10):
    e(f"ds_read_b32 v{X+p}, v33 offset:{p*256}")
A = 8
for p in range(10):
    e(f"s_waitcnt vmcnt({10-p}) lgkmcnt(0)")
    for j in range(4):
        w = 40 + 4 * p + j
        e(f"v_lshlrev_b32 v32, 16, v{w}")
        e(f"v_and_b32 v33, 0xffff0000, v{w}")
        op = "v_mul_f32" if p == 0 else "v_fmac_f32"
        e(f"{op} v{A+2*j}, v{X+p}, v32")
        e(f"{op} v{A+2*j+1}, v{X+p}, v33")
reduce_hi([A + i for i in range(8)], (8, 4))
e("v_lshrrev_b32 v32, 4, v1")
e("v_lshlrev_b32 v32, 3, v32")
e("v_lshl_add_u32 v32, v3, 5, v32")
e("s_lshl_b32 s15, s14, 7")
e("v_add_u32 v32, s15, v32")
e(f"ds_write_b64 v32, {vr(A,2)} offset:10240")
e("s_waitcnt lgkmcnt(0)")
e("s_barrier")
e("v_cmp_gt_u32 vcc, 32, v0")
e("s_and_saveexec_b64 s[36:37], vcc")
e("s_cbranch_execz L_k1_exit")
e("v_lshlrev_b32 v32, 2, v0")
for w in range(4):
    e(f"ds_read_b32 v{A+w}, v32 offset:{10240+128*w}")
e("s_waitcnt lgkmcnt(0)")
e(f"v_add_f32 v{A}, v{A}, v{A+1}")
e(f"v_add_f32 v{A+2}, v{A+2}, v{A+3}")
e(f"v_add_f32 v{A}, v{A}, v{A+2}")
e(f"v_cvt_pk_bf16_f32 v33, v{A}, v{A}")
e("s_cmp_ge_u32 s2, 192")
e("s_cbranch_scc1 L_k1_h")
e("buffer_store_short v33, v7, s[28:31], s25 offen")
e("s_cmp_ge_u32 s2, 32")
e("s_cbranch_scc1 L_k1_exit")
e("v_cmp_eq_u32 vcc, 0, v0")
e("s_and_saveexec_b64 s[36:37], vcc")
e("s_lshl_b32 s15, s2, 8")
e(f"s_add_u32 s15, s15, {WS_CNT}")
e("v_mov_b32 v34, 0")
e("buffer_store_dword v34, v34, s[28:31], s15 offen")
e("s_branch L_k1_exit")
e("L_k1_h:")
e("s_waitcnt vmcnt(0)")
e("v_lshlrev_b32 v33, 16, v33")
e("v_lshlrev_b32 v34, 16, v38")
e("v_add_f32 v33, v33, v34")
bf16_round([33], 34)
e("v_mul_f32 v34, v33, v33")
e("v_mov_b32 v35, 1.0")
e("v_fmac_f32 v35, 0x3d372713, v34")
e("v_mul_f32 v34, v33, v35")
e(f"v_mul_f32 v34, {f2h(-2.0*math.sqrt(2.0/math.pi)*math.log2(math.e))}, v34")
e("v_exp_f32 v34, v34")
nop(0)
e("v_add_f32 v34, 1.0, v34")
e("v_rcp_f32 v34, v34")
nop(0)
e("v_mul_f32 v33, v33, v34")
bf16_round([33], 34)
e("s_lshl_b32 s15, s25, 1")
e(f"s_add_u32 s15, s15, {WS_H}")
e("buffer_store_dword v33, v32, s[28:31], s15 offen")
e("L_k1_exit:")
e("s_endpgm")

SRD_K, SRD_V, SRD_WS = 40, 44, 48
S_WAVE, S_HEAD, S_SPLIT, S_T0, S_T1, S_NEW, S_CNTOFF = 52, 53, 54, 55, 56, 57, 58
S_TK = [60, 61]
S_MASKHI, S_LOG2E, S_SCALE = 62, 63, 64
S_EXEC = 66
V_KV, V_LANE, V_M, V_L = 1, 2, 3, 4
T = [6, 7, 8, 9, 10, 11, 5]
ACC = 12
Q = 36
VA = [48, 49]
V_ZERO = 50
U = [52 + i for i in range(12)]
KB = [64, 88]
VB = [112, 136]
NVG2 = 160
LDS_PART = 0
LDS_ML = 6400
NST = [0]
def stamp():
    if STAMP:
        e("s_waitcnt lgkmcnt(0)")
        e(f"s_memrealtime s[{80+2*NST[0]}:{81+2*NST[0]}]")
        e("s_waitcnt lgkmcnt(0)")
        NST[0] += 1

def load_kv(buf, srdreg, soff):
    for i in range(2):
        for t in range(3):
            e(f"buffer_load_dwordx4 {vr(buf + (i*3+t)*4, 4)}, v{V_KV}, {sr(srdreg,4)}, s{soff} offen offset:{i*3072+t*128}{NTFLAG}")

def ticket(b):
    e(f"v_mov_b32 v{VA[b]}, 1")
    e("s_mov_b64 exec, 1")
    e(f"buffer_atomic_add v{VA[b]}, v{V_ZERO}, {sr(SRD_WS,4)}, s{S_CNTOFF} offen sc0")
    e("s_mov_b64 exec, -1")

kstart("k2_attn_kernel")
e("s_cmp_ge_u32 s2, 256")
e("s_cbranch_scc1 L_k2_exit")
stamp()
e("s_load_dwordx4 s[4:7], s[0:1], 8")
e("s_load_dwordx2 s[8:9], s[0:1], 96")
e(f"v_and_b32 v{V_LANE}, 63, v0")
e(f"v_lshrrev_b32 v{T[0]}, 6, v0")
nop(0)
e(f"v_readfirstlane_b32 s{S_WAVE}, v{T[0]}")
e(f"s_lshr_b32 s{S_HEAD}, s2, 3")
e(f"s_and_b32 s{S_SPLIT}, s2, 7")
e(f"s_mov_b32 s{S_MASKHI}, 0xffff0000")
e(f"s_mov_b32 s{S_LOG2E}, {LOG2E:#x}")
e(f"s_mov_b32 s{S_SCALE}, {SCALE:#x}")
e(f"v_lshrrev_b32 v{T[0]}, 3, v{V_LANE}")
e(f"v_and_b32 v{T[1]}, 7, v{V_LANE}")
e(f"v_lshlrev_b32 v{T[1]}, 4, v{T[1]}")
e(f"v_mul_u32_u24 v{V_KV}, 384, v{T[0]}")
e(f"v_add_u32 v{V_KV}, v{V_KV}, v{T[1]}")
e(f"v_mov_b32 v{V_ZERO}, 0")
e(f"s_lshl_b32 s{S_CNTOFF}, s{S_HEAD}, 8")
e(f"s_add_u32 s{S_CNTOFF}, s{S_CNTOFF}, {WS_CNT}")
e(f"s_lshl_b32 s{S_TK[0]}, s{S_SPLIT}, 3")
e(f"s_add_u32 s{S_TK[0]}, s{S_TK[0]}, s{S_WAVE}")
e(f"s_add_u32 s{S_TK[1]}, s{S_TK[0]}, 64")
e("s_waitcnt lgkmcnt(0)")
e(f"s_mul_i32 s{S_T0}, s{S_HEAD}, 12582912")
srd_off(SRD_K, 4, 5, S_T0, 12582912)
srd_off(SRD_V, 6, 7, S_T0, 12582912)
srd(SRD_WS, 8, 9, WS_BYTES)
e(f"s_mul_i32 s{S_T0}, s{S_HEAD}, 384")
for t in range(3):
    e(f"buffer_load_dwordx4 {vr(Q+4*t,4)}, v{T[1]}, {sr(SRD_WS,4)}, s{S_T0} offen offset:{WS_Q + t*128}")
for b in range(2):
    ticket(b)
    e(f"s_mul_i32 s{S_T0}, s{S_TK[b]}, 6144")
    load_kv(KB[b], SRD_K, S_T0)
    load_kv(VB[b], SRD_V, S_T0)
for a in range(24):
    e(f"v_mov_b32 v{ACC+a}, 0")
e(f"v_mov_b32 v{V_M}, 0xff800000")
e(f"v_mov_b32 v{V_L}, 0")

def batch(b):
    kb, vb = KB[b], VB[b]
    s0, s1 = T[0], T[1]
    e(f"s_cmp_ge_u32 s{S_TK[b]}, 2048")
    e("s_cbranch_scc1 L_k2_done")
    e("s_waitcnt vmcnt(19)")
    e(f"v_readfirstlane_b32 s{S_TK[b]}, v{VA[b]}")
    for r in range(12):
        for i, s in ((0, s0), (1, s1)):
            src2 = "0" if r == 0 else f"v{s}"
            e(f"v_dot2_f32_bf16 v{s}, v{kb+i*12+r}, v{Q+r}, {src2}")
    e(f"s_add_u32 s{S_TK[b]}, s{S_TK[b]}, 128")
    e(f"s_mul_i32 s{S_NEW}, s{S_TK[b]}, 6144")
    ticket(b)
    load_kv(kb, SRD_K, S_NEW)
    for ctrl in ("quad_perm:[1,0,3,2]", "quad_perm:[2,3,0,1]", "row_half_mirror"):
        dpp("v_add_f32", s0, s0, s0, ctrl)
        dpp("v_add_f32", s1, s1, s1, ctrl)
        nop(0)
    e(f"v_cvt_pk_bf16_f32 v{T[2]}, v{s0}, v{s1}")
    e(f"v_lshlrev_b32 v{s0}, 16, v{T[2]}")
    e(f"v_and_b32 v{s1}, s{S_MASKHI}, v{T[2]}")
    e(f"v_mul_f32 v{s0}, s{S_SCALE}, v{s0}")
    e(f"v_mul_f32 v{s1}, s{S_SCALE}, v{s1}")
    e(f"v_cvt_pk_bf16_f32 v{T[2]}, v{s0}, v{s1}")
    e(f"v_lshlrev_b32 v{s0}, 16, v{T[2]}")
    e(f"v_and_b32 v{s1}, s{S_MASKHI}, v{T[2]}")
    e(f"v_mul_f32 v{s0}, s{S_LOG2E}, v{s0}")
    e(f"v_mul_f32 v{s1}, s{S_LOG2E}, v{s1}")
    e(f"v_max3_f32 v{T[2]}, v{V_M}, v{s0}, v{s1}")
    e(f"v_sub_f32 v{T[3]}, v{V_M}, v{T[2]}")
    e(f"v_sub_f32 v{s0}, v{s0}, v{T[2]}")
    e(f"v_sub_f32 v{s1}, v{s1}, v{T[2]}")
    e(f"v_exp_f32 v{T[3]}, v{T[3]}")
    e(f"v_exp_f32 v{s0}, v{s0}")
    e(f"v_exp_f32 v{s1}, v{s1}")
    e(f"v_mov_b32 v{V_M}, v{T[2]}")
    e(f"v_fma_f32 v{V_L}, v{V_L}, v{T[3]}, v{s0}")
    e(f"v_add_f32 v{V_L}, v{V_L}, v{s1}")
    for a in range(24):
        e(f"v_mul_f32 v{ACC+a}, v{ACC+a}, v{T[3]}")
    e("s_waitcnt vmcnt(20)")
    for i, p in ((0, s0), (1, s1)):
        for r in range(12):
            w = vb + i * 12 + r
            ta, tb = U[(2 * r) % 12], U[(2 * r + 1) % 12]
            e(f"v_lshlrev_b32 v{ta}, 16, v{w}")
            e(f"v_and_b32 v{tb}, s{S_MASKHI}, v{w}")
            e(f"v_fmac_f32 v{ACC+2*r}, v{p}, v{ta}")
            e(f"v_fmac_f32 v{ACC+2*r+1}, v{p}, v{tb}")
    load_kv(vb, SRD_V, S_NEW)

stamp()
e("L_k2_loop:")
batch(0)
batch(1)
e("s_branch L_k2_loop")
e("L_k2_done:")
stamp()
c("---- tail: wave-level combine ----")
e(f"v_mov_b32 v{T[0]}, v{V_M}")
wave_allreduce("v_max_f32", T[0], T[1], [8, 16, 32])
e(f"v_sub_f32 v{T[1]}, v{V_M}, v{T[0]}")
e(f"v_exp_f32 v{T[1]}, v{T[1]}")
nop(0)
for a in range(24):
    e(f"v_mul_f32 v{ACC+a}, v{ACC+a}, v{T[1]}")
e(f"v_mul_f32 v{T[1]}, v{V_L}, v{T[1]}")
wave_allreduce("v_add_f32", T[1], T[2], [8, 16, 32])
reduce_hi([ACC + i for i in range(24)])
e(f"s_mul_i32 s{S_T0}, s{S_WAVE}, 800")
e(f"v_and_b32 v{T[4]}, 7, v{V_LANE}")
e(f"v_mul_u32_u24 v{T[4]}, 96, v{T[4]}")
e(f"v_lshrrev_b32 v{T[5]}, 4, v{V_LANE}")
e(f"v_mul_u32_u24 v{T[6]}, 24, v{T[5]}")
e(f"v_add3_u32 v{T[4]}, v{T[4]}, v{T[6]}, s{S_T0}")
for i in range(3):
    e(f"ds_write_b64 v{T[4]}, {vr(ACC+2*i,2)} offset:{LDS_PART + i*8}")
e(f"s_lshl_b32 s{S_T0}, s{S_WAVE}, 3")
e(f"v_mov_b32 v{T[5]}, s{S_T0}")
e(f"ds_write_b64 v{T[5]}, {vr(T[0],2)} offset:{LDS_ML}")
e("s_waitcnt lgkmcnt(0)")
e("s_barrier")
stamp()
if STAMP:
    for i in range(4):
        e(f"v_mov_b32 v{40+i}, s{80+2*i}")
    e(f"s_lshl_b32 s{S_T0}, s2, 3")
    e(f"s_add_u32 s{S_T0}, s{S_T0}, s{S_WAVE}")
    e(f"s_lshl_b32 s{S_T0}, s{S_T0}, 4")
    e(f"s_add_u32 s{S_T0}, s{S_T0}, {4<<20}")
    e(f"buffer_store_dwordx4 v[40:43], v{V_ZERO}, {sr(SRD_WS,4)}, s{S_T0} offen")
e(f"v_cmp_gt_u32 vcc, 192, v0")
e(f"s_and_saveexec_b64 {sr(S_EXEC,2)}, vcc")
e("s_cbranch_execz L_k2_exit")
ML = ACC
for i in range(4):
    e(f"ds_read_b128 {vr(ML+4*i,4)}, v{V_ZERO} offset:{LDS_ML + 16*i}")
e(f"v_lshlrev_b32 v{T[4]}, 2, v0")
OP = 28
for w in range(8):
    e(f"ds_read_b32 v{OP+w}, v{T[4]} offset:{LDS_PART + w*800}")
e(f"v_mul_u32_u24 v{T[5]}, 2731, v0")
e(f"v_lshrrev_b32 v{T[5]}, 16, v{T[5]}")
e(f"v_mul_u32_u24 v{T[6]}, 24, v{T[5]}")
e(f"v_sub_u32 v{T[6]}, v0, v{T[6]}")
e(f"v_lshrrev_b32 v{T[2]}, 3, v{T[6]}")
e(f"v_lshlrev_b32 v{T[2]}, 6, v{T[2]}")
e(f"v_and_b32 v{T[6]}, 7, v{T[6]}")
e(f"v_lshlrev_b32 v{T[5]}, 3, v{T[5]}")
e(f"v_add3_u32 v{T[2]}, v{T[2]}, v{T[5]}, v{T[6]}")
e(f"v_lshlrev_b32 v{T[2]}, 2, v{T[2]}")
e("s_waitcnt lgkmcnt(0)")
e(f"v_max3_f32 v{T[0]}, v{ML}, v{ML+2}, v{ML+4}")
e(f"v_max3_f32 v{T[0]}, v{T[0]}, v{ML+6}, v{ML+8}")
e(f"v_max3_f32 v{T[0]}, v{T[0]}, v{ML+10}, v{ML+12}")
e(f"v_max_f32 v{T[0]}, v{T[0]}, v{ML+14}")
for w in range(8):
    e(f"v_sub_f32 v{ML+2*w}, v{ML+2*w}, v{T[0]}")
for w in range(8):
    e(f"v_exp_f32 v{ML+2*w}, v{ML+2*w}")
nop(0)
e(f"v_mul_f32 v{T[1]}, v{ML}, v{ML+1}")
e(f"v_mul_f32 v{T[3]}, v{ML}, v{OP}")
for w in range(1, 8):
    e(f"v_fmac_f32 v{T[1]}, v{ML+2*w}, v{ML+2*w+1}")
    e(f"v_fmac_f32 v{T[3]}, v{ML+2*w}, v{OP+w}")
e(f"s_lshl_b32 s{S_T0}, s2, 10")
e(f"s_add_u32 s{S_T0}, s{S_T0}, {WS_P}")
e(f"buffer_store_dword v{T[3]}, v{T[2]}, {sr(SRD_WS,4)}, s{S_T0} offen")
e(f"v_cmp_eq_u32 vcc, 0, v0")
e(f"s_and_saveexec_b64 {sr(S_EXEC,2)}, vcc")
e("s_cbranch_execz L_k2_exit")
e(f"buffer_store_dwordx2 {vr(T[0],2)}, v{V_ZERO}, {sr(SRD_WS,4)}, s{S_T0} offen offset:768")
e("L_k2_exit:")
e("s_endpgm")

kstart("k3_out_kernel")
e("s_cmp_ge_u32 s2, 256")
e("s_cbranch_scc1 L_k3_exit")
e("s_load_dwordx2 s[4:5], s[0:1], 32")
e("s_load_dwordx2 s[6:7], s[0:1], 64")
e("s_load_dwordx2 s[8:9], s[0:1], 96")
e("s_lshr_b32 s10, s2, 3")
e("s_and_b32 s11, s2, 7")
e("v_mul_u32_u24 v1, 6554, v0")
e("v_lshrrev_b32 v1, 16, v1")
e("v_mul_u32_u24 v2, 10, v1")
e("v_sub_u32 v2, v0, v2")
e("v_mul_u32_u24 v3, 1280, v1")
e("v_lshl_add_u32 v3, v2, 4, v3")
e("v_lshlrev_b32 v4, 2, v0")
e("v_mov_b32 v5, 0")
e("s_waitcnt lgkmcnt(0)")
srd(12, 4, 5, 6144 * 1280)
srd(16, 6, 7, 1536 * 1280)
srd(20, 8, 9, WS_BYTES)
e("s_lshl_b32 s24, s10, 13")
e(f"s_add_u32 s24, s24, {WS_P}")
for s in range(8):
    e(f"s_add_u32 s25, s24, {1024*s}")
    e(f"buffer_load_dword v{8+s}, v4, s[20:23], s25 offen")
    e(f"buffer_load_dwordx2 {vr(16+2*s,2)}, v5, s[20:23], s25 offen offset:768")
e("s_mul_i32 s26, s10, 245760")
e("s_mul_i32 s27, s11, 160")
e("s_add_u32 s26, s26, s27")
for p in range(8):
    e(f"buffer_load_dwordx4 {vr(40+4*p,4)}, v3, s[12:15], s26 offen")
    if p < 7:
        e(f"s_add_u32 s26, s26, {24*1280}")
e(f"s_mul_i32 s26, s10, {48*1280}")
e("s_add_u32 s26, s26, s27")
for p in range(2):
    e(f"buffer_load_dwordx4 {vr(72+4*p,4)}, v3, s[16:19], s26 offen")
    if p < 1:
        e(f"s_add_u32 s26, s26, {24*1280}")
e("v_lshlrev_b32 v6, 2, v1")
e(f"s_mul_i32 s26, s10, {48*4}")
e(f"s_add_u32 s26, s26, {WS_H}")
e("buffer_load_dword v80, v6, s[20:23], s26 offen")
e("buffer_load_dword v81, v6, s[20:23], s26 offen offset:96")
e("s_waitcnt vmcnt(12)")
e("v_max3_f32 v32, v16, v18, v20")
e("v_max3_f32 v32, v32, v22, v24")
e("v_max3_f32 v32, v32, v26, v28")
e("v_max_f32 v32, v32, v30")
for s in range(8):
    e(f"v_sub_f32 v{16+2*s}, v{16+2*s}, v32")
for s in range(8):
    e(f"v_exp_f32 v{16+2*s}, v{16+2*s}")
nop(0)
e("v_mul_f32 v33, v16, v17")
e("v_mul_f32 v34, v16, v8")
for s in range(1, 8):
    e(f"v_fmac_f32 v33, v{16+2*s}, v{17+2*s}")
    e(f"v_fmac_f32 v34, v{16+2*s}, v{8+s}")
e("v_rcp_f32 v35, v33")
nop(0)
e("v_mul_f32 v36, v34, v35")
e("v_fma_f32 v37, -v36, v33, v34")
e("v_fma_f32 v36, v37, v35, v36")
bf16_round([36], 37)
e("ds_write_b32 v4, v36 offset:16384")
e("s_waitcnt lgkmcnt(0)")
e("s_barrier")
for p in range(8):
    e(f"ds_read_b32 v{8+p}, v6 offset:{16384+96*p}")
Y = 16
for p in range(8):
    e(f"s_waitcnt vmcnt({11-p}) lgkmcnt({7-p})")
    for j in range(4):
        w = 40 + 4 * p + j
        e(f"v_lshlrev_b32 v32, 16, v{w}")
        e(f"v_and_b32 v33, 0xffff0000, v{w}")
        op = "v_mul_f32" if p == 0 else "v_fmac_f32"
        e(f"{op} v{Y+2*j}, v{8+p}, v32")
        e(f"{op} v{Y+2*j+1}, v{8+p}, v33")
e("s_waitcnt vmcnt(0)")
for p in range(2):
    for j in range(4):
        w = 72 + 4 * p + j
        e(f"v_lshlrev_b32 v32, 16, v{w}")
        e(f"v_and_b32 v33, 0xffff0000, v{w}")
        op = "v_mul_f32" if p == 0 else "v_fmac_f32"
        e(f"{op} v{Y+8+2*j}, v{80+p}, v32")
        e(f"{op} v{Y+8+2*j+1}, v{80+p}, v33")
e("v_mul_u32_u24 v32, 320, v1")
e("v_lshl_add_u32 v32, v2, 5, v32")
e("v_cmp_gt_u32 vcc, 240, v0")
e("s_and_saveexec_b64 s[28:29], vcc")
e(f"ds_write_b128 v32, {vr(Y,4)}")
e(f"ds_write_b128 v32, {vr(Y+4,4)} offset:16")
e(f"ds_write_b128 v32, {vr(Y+8,4)} offset:8192")
e(f"ds_write_b128 v32, {vr(Y+12,4)} offset:8208")
e("s_mov_b64 exec, s[28:29]")
e("s_waitcnt lgkmcnt(0)")
e("s_barrier")
e("v_and_b32 v33, 127, v0")
e("v_cmp_gt_u32 vcc, 80, v33")
e("s_and_saveexec_b64 s[28:29], vcc")
e("s_cbranch_execz L_k3_exit")
e("v_lshrrev_b32 v34, 7, v0")
e("v_lshlrev_b32 v35, 13, v34")
e("v_lshl_add_u32 v35, v33, 2, v35")
for r in range(24):
    e(f"ds_read_b32 v{40+r}, v35 offset:{320*r}")
e(f"v_mul_u32_u24 v36, {WS_Z-WS_Y}, v34")
e("v_lshl_add_u32 v36, v33, 2, v36")
e("s_mul_i32 s26, s10, 2560")
e("s_mul_i32 s27, s11, 320")
e("s_add_u32 s26, s26, s27")
e(f"s_add_u32 s26, s26, {WS_Y}")
e("s_waitcnt lgkmcnt(0)")
for st in (12, 6, 3):
    for r in range(st):
        e(f"v_add_f32 v{40+r}, v{40+r}, v{40+r+st}")
e("v_add_f32 v40, v40, v41")
e("v_add_f32 v40, v40, v42")
e("buffer_store_dword v40, v36, s[20:23], s26 offen")
e("L_k3_exit:")
e("s_endpgm")

kstart("k4_fin_kernel")
e("s_cmp_ge_u32 s2, 20")
e("s_cbranch_scc1 L_k4_exit")
e("s_load_dwordx2 s[4:5], s[0:1], 0")
e("s_load_dwordx4 s[8:11], s[0:1], 72")
e("s_load_dwordx2 s[6:7], s[0:1], 96")
e("v_and_b32 v1, 7, v0")
e("v_lshrrev_b32 v2, 3, v0")
e("v_mul_u32_u24 v3, 2560, v2")
e("v_lshl_add_u32 v3, v1, 4, v3")
e("v_lshlrev_b32 v6, 1, v0")
e("s_waitcnt lgkmcnt(0)")
srd(12, 6, 7, WS_BYTES)
srd(16, 4, 5, 1280)
srd(20, 8, 9, 1280)
srd(24, 10, 11, 1280)
e("s_lshl_b32 s28, s2, 7")
e("s_lshl_b32 s29, s2, 6")
e(f"s_add_u32 s30, s28, {WS_Y}")
e(f"s_add_u32 s31, s28, {WS_Z}")
e("buffer_load_dwordx4 v[8:11], v3, s[12:15], s30 offen")
e("buffer_load_dwordx4 v[12:15], v3, s[12:15], s31 offen")
e("buffer_load_ushort v24, v6, s[16:19], s29 offen")
e("buffer_load_ushort v25, v6, s[20:23], s29 offen")
e("s_waitcnt vmcnt(2)")
reduce_hi([8 + i for i in range(8)], (8,))
e("v_and_b32 v16, 63, v0")
e("v_lshrrev_b32 v16, 4, v16")
e("v_lshlrev_b32 v16, 3, v16")
e("v_lshl_add_u32 v16, v1, 5, v16")
e("v_lshrrev_b32 v17, 6, v0")
e("v_lshl_add_u32 v16, v17, 8, v16")
e("ds_write_b64 v16, v[8:9]")
e("s_waitcnt lgkmcnt(0)")
e("s_barrier")
e("v_cmp_gt_u32 vcc, 32, v0")
e("s_and_saveexec_b64 s[32:33], vcc")
e("s_cbranch_execz L_k4_exit")
e("v_lshrrev_b32 v16, 2, v0")
e("v_lshlrev_b32 v16, 5, v16")
e("v_and_b32 v17, 3, v0")
e("v_lshl_add_u32 v16, v17, 2, v16")
for w in range(4):
    e(f"ds_read_b32 v{8+w}, v16 offset:{256*w}")
    e(f"ds_read_b32 v{12+w}, v16 offset:{256*w+16}")
e("s_waitcnt vmcnt(0) lgkmcnt(0)")
for w in range(1, 4):
    e(f"v_add_f32 v8, v8, v{8+w}")
    e(f"v_add_f32 v12, v12, v{12+w}")
bf16_round([8, 12], 20)
e("v_lshlrev_b32 v25, 16, v25")
e("v_lshlrev_b32 v24, 16, v24")
e("v_add_f32 v12, v12, v25")
bf16_round([12], 20)
e(f"v_mul_f32 v13, {f2h(-math.log2(math.e))}, v12")
e("v_exp_f32 v13, v13")
nop(0)
e("v_add_f32 v13, 1.0, v13")
e("v_rcp_f32 v13, v13")
nop(0)
e("v_mul_f32 v12, v12, v13")
bf16_round([12], 20)
e("v_mul_f32 v8, v8, v12")
bf16_round([8], 20)
e("v_add_f32 v8, v8, v24")
e("v_cvt_pk_bf16_f32 v8, v8, v8")
e("buffer_store_short v8, v6, s[24:27], s29 offen")
e("L_k4_exit:")
e("s_endpgm")

def kd(name, nv, ns):
    return f""".p2align 6
.amdhsa_kernel {name}
  .amdhsa_next_free_vgpr {nv}
  .amdhsa_next_free_sgpr {ns}
  .amdhsa_accum_offset {(nv+3)//4*4}
  .amdhsa_group_segment_fixed_size 0
  .amdhsa_kernarg_size 104
  .amdhsa_user_sgpr_count 2
  .amdhsa_user_sgpr_kernarg_segment_ptr 1
  .amdhsa_system_sgpr_workgroup_id_x 1
  .amdhsa_float_denorm_mode_32 3
.end_amdhsa_kernel
"""
L.append('\n.section .rodata,"a"')
L.append(kd("k1_proj_kernel", 80, 40))
L.append(kd("k2_attn_kernel", int(os.environ.get("NVG2", "256")), 96))
L.append(kd("k3_out_kernel", 88, 40))
L.append(kd("k4_fin_kernel", 32, 40))
open(OUT, "w").write("\n".join(L) + "\n")
print("wrote", OUT, len(L), "lines")
```

```python
import sys, os, struct, math

NAME = "recurrent_scan__mha_block_cached__dense_activation_gelu__decode"
OUT = sys.argv[1] if len(sys.argv) > 1 else f"cdna_kernels/{NAME}.s"
STAMP = os.environ.get("STAMP", "") == "1"
ROT = int(os.environ.get("ROT", "21"))
KN = NAME + "_kernel"

L = []
def e(s=""):
    L.append("    " + s if s and not s.endswith(":") else s)
def c(s):
    L.append("    ; " + s)
def nop(n):
    e(f"s_nop {n}")
def vr(a, n):
    return f"v[{a}:{a+n-1}]"
def sr(a, n):
    return f"s[{a}:{a+n-1}]"
def f2h(x):
    return hex(struct.unpack("<I", struct.pack("<f", x))[0])

WS_CNT = 0
WS_P = 65536
WS_Y = 327680
WS_Z = 983040
WS_QP = 1638400
WS_BYTES = 8 << 20
LOG2E = 0x3fb8aa3b
SCALE = 0x3d93cd3a
LDS_BYTES = 43008

header = f"""; Kernarg layout for this problem (104 bytes, ptrs only, base s[0:1]):
; @launch grid=(256,1,1) block=(512,1,1) lds={LDS_BYTES}
.amdgcn_target "amdgcn-amd-amdhsa--gfx950"
.text
.globl {KN}
.p2align 8
.type {KN},@function
{KN}:"""

def srd(d, lo, hi, nbytes):
    e(f"s_mov_b32 s{d}, s{lo}")
    e(f"s_and_b32 s{d+1}, s{hi}, 0xffff")
    e(f"s_mov_b32 s{d+2}, {nbytes}")
    e(f"s_mov_b32 s{d+3}, 0x00020000")

def srd_off(d, lo, hi, soff, nbytes):
    e(f"s_add_u32 s{d}, s{lo}, s{soff}")
    e(f"s_addc_u32 s{d+1}, s{hi}, 0")
    e(f"s_and_b32 s{d+1}, s{d+1}, 0xffff")
    e(f"s_mov_b32 s{d+2}, {nbytes}")
    e(f"s_mov_b32 s{d+3}, 0x00020000")

def dpp(op, d, a, b, ctrl):
    e(f"{op}_dpp v{d}, v{a}, v{b} {ctrl} row_mask:0xf bank_mask:0xf")

def wave_allreduce(op, v, tmp, levels):
    for lv in levels:
        nop(1)
        if lv == 1:
            dpp(op, v, v, v, "quad_perm:[1,0,3,2]")
        elif lv == 2:
            dpp(op, v, v, v, "quad_perm:[2,3,0,1]")
        elif lv == 4:
            dpp(op, v, v, v, "row_half_mirror")
        elif lv == 8:
            dpp(op, v, v, v, "row_ror:8")
        elif lv == 16:
            e(f"v_mov_b32 v{tmp}, v{v}")
            nop(1)
            e(f"v_permlane16_swap_b32 v{v}, v{tmp}")
            e(f"{op} v{v}, v{v}, v{tmp}")
        elif lv == 32:
            e(f"v_mov_b32 v{tmp}, v{v}")
            nop(1)
            e(f"v_permlane32_swap_b32 v{v}, v{tmp}")
            e(f"{op} v{v}, v{v}, v{tmp}")

def reduce_hi(regs, extra_ror=(8,)):
    n = len(regs)
    h = n // 2
    nop(1)
    for i in range(h):
        e(f"v_permlane32_swap_b32 v{regs[i]}, v{regs[i+h]}")
    for i in range(h):
        e(f"v_add_f32 v{regs[i]}, v{regs[i]}, v{regs[i+h]}")
    q = n // 4
    nop(1)
    for i in range(q):
        e(f"v_permlane16_swap_b32 v{regs[i]}, v{regs[i+q]}")
    for i in range(q):
        e(f"v_add_f32 v{regs[i]}, v{regs[i]}, v{regs[i+q]}")
    for ror in extra_ror:
        nop(1)
        for i in range(q):
            dpp("v_add_f32", regs[i], regs[i], regs[i], f"row_ror:{ror}")

def bf16_round(v_list, tmp):
    for i in range(0, len(v_list), 2):
        a = v_list[i]
        b = v_list[i + 1] if i + 1 < len(v_list) else v_list[i]
        e(f"v_cvt_pk_bf16_f32 v{tmp}, v{a}, v{b}")
        e(f"v_lshlrev_b32 v{a}, 16, v{tmp}")
        if b != a:
            e(f"v_and_b32 v{b}, 0xffff0000, v{tmp}")

L.append(header)
SRD_K, SRD_V, SRD_WS, SRD_X, SRD_W, SRD_WO, SRD_W2, SRD_B2, SRD_OUT, SRD_B1, SRD_DBG = 32, 36, 40, 44, 48, 52, 56, 60, 64, 68, 72
S_WAVE, S_HEAD, S_SPLIT, S_T0, S_T1, S_NEW, S_AT, S_ROT = 76, 77, 78, 79, 80, 81, 82, 83
S_CB, S_DB = 84, 86
S_TK = [88, 89]
S_MASKHI, S_LOG2E, S_SCALE = 90, 91, 92
S_T2 = 93
S_EXEC, S_EXEC2 = 94, 96
V_KV, V_LANE, V_M, V_L = 1, 2, 3, 4
T = [6, 7, 8, 9, 10, 11, 5]
ACC = 12
Q = 36
V_ZERO = 52
SC = [53, 54]
U = [58 + i for i in range(6)]
KB = [64, 112]
VB = [88, 136]
WR = 160
XR = 180
XF = 186
XN = 196
PQ = 204
V_B1 = 202
NTK = 2048
TKB = 6144
LDS_XN = 0
LDS_QPART = 20480
LDS_HPART = 22016
LDS_QFIN = 25856
LDS_HFIN = 40960
LDS_PART = 0
LDS_ML = 6400
LDS_O = 7168
LDS_Y = 8192

NST = [0]
def stamp():
    if STAMP:
        e("s_waitcnt lgkmcnt(0)")
        e(f"s_memrealtime s[{4+2*NST[0]}:{5+2*NST[0]}]")
        e("s_waitcnt lgkmcnt(0)")
        NST[0] += 1

def load_kv(buf, srdreg, soff):
    for i in range(2):
        for t in range(3):
            e(f"buffer_load_dwordx4 {vr(buf + (i*3+t)*4, 4)}, v{V_KV}, {sr(srdreg,4)}, s{soff} offen offset:{i*3072+t*128} nt")

def tk2off(d, tk):
    e(f"s_add_u32 s{d}, s{tk}, s{S_ROT}")
    e(f"s_and_b32 s{d}, s{d}, {NTK-1}")
    e(f"s_mul_i32 s{d}, s{d}, {TKB}")
    e(f"s_cmp_lt_u32 s{tk}, {NTK}")
    e(f"s_cselect_b32 s{d}, s{d}, 0x7f000000")

e("s_cmp_ge_u32 s2, 256")
e("s_cbranch_scc1 L_exit")
e("s_setprio 3")
if STAMP:
    e("s_memrealtime s[98:99]")
e("s_load_dwordx16 s[4:19], s[0:1], 0")
e("s_load_dwordx8 s[20:27], s[0:1], 64")
e("s_load_dwordx2 s[28:29], s[0:1], 96")
e(f"v_and_b32 v{V_LANE}, 63, v0")
e(f"v_lshrrev_b32 v{T[0]}, 6, v0")
nop(0)
e(f"v_readfirstlane_b32 s{S_WAVE}, v{T[0]}")
e(f"s_lshr_b32 s{S_HEAD}, s2, 3")
e(f"s_and_b32 s{S_SPLIT}, s2, 7")
e(f"s_mov_b32 s{S_MASKHI}, 0xffff0000")
e(f"s_mov_b32 s{S_LOG2E}, {LOG2E:#x}")
e(f"s_mov_b32 s{S_SCALE}, {SCALE:#x}")
e(f"v_lshrrev_b32 v{T[0]}, 3, v{V_LANE}")
e(f"v_and_b32 v{T[1]}, 7, v{V_LANE}")
e(f"v_lshlrev_b32 v{T[1]}, 4, v{T[1]}")
e(f"v_mul_u32_u24 v{V_KV}, 384, v{T[0]}")
e(f"v_add_u32 v{V_KV}, v{V_KV}, v{T[1]}")
e(f"v_mov_b32 v{V_ZERO}, 0")
e(f"s_mul_i32 s{S_ROT}, s{S_HEAD}, {ROT}")
e(f"s_lshl_b32 s{S_TK[0]}, s{S_SPLIT}, 3")
e(f"s_add_u32 s{S_TK[0]}, s{S_TK[0]}, s{S_WAVE}")
e(f"s_add_u32 s{S_TK[1]}, s{S_TK[0]}, 64")
c("sentinel clear addresses: t<64 P, <224 Y, <384 Z")
e(f"s_lshl_b32 s{S_T0}, s2, 10")
e(f"s_add_u32 s{S_T0}, s{S_T0}, {WS_P}")
e(f"s_mul_i32 s{S_T1}, s2, 2560")
e(f"s_add_u32 s{S_T2}, s{S_T1}, {WS_Z - 224*16}")
e(f"s_add_u32 s{S_T1}, s{S_T1}, {WS_Y - 64*16}")
e(f"v_mov_b32 v{T[2]}, s{S_T0}")
e(f"v_mov_b32 v{T[3]}, s{S_T1}")
e(f"v_mov_b32 v{T[4]}, s{S_T2}")
e(f"v_cmp_le_u32 vcc, 64, v0")
nop(1)
e(f"v_cndmask_b32 v{T[2]}, v{T[2]}, v{T[3]}, vcc")
e(f"v_cmp_le_u32 vcc, 224, v0")
nop(1)
e(f"v_cndmask_b32 v{T[2]}, v{T[2]}, v{T[4]}, vcc")
e(f"v_lshl_add_u32 v{T[2]}, v0, 4, v{T[2]}")
for i in range(4):
    e(f"v_mov_b32 v{ACC+i}, -1")
e("s_waitcnt lgkmcnt(0)")
srd(SRD_WS, 28, 29, WS_BYTES)
e(f"v_cmp_gt_u32 vcc, 384, v0")
e(f"s_and_saveexec_b64 {sr(S_EXEC,2)}, vcc")
e("s_cbranch_execz L_noclr")
e(f"buffer_store_dwordx4 {vr(ACC,4)}, v{T[2]}, {sr(SRD_WS,4)}, 0 offen sc1")
e("L_noclr:")
e("s_mov_b64 exec, -1")
e(f"s_lshl_b32 s{S_T0}, s{S_HEAD}, 8")
e(f"s_or_b32 s{S_T1}, s{S_SPLIT}, s{S_WAVE}")
e(f"s_cmp_lg_u32 s{S_T1}, 0")
e("s_cbranch_scc1 L_nocnt")
e("s_mov_b64 exec, 1")
e(f"buffer_store_dword v{V_ZERO}, v{V_ZERO}, {sr(SRD_WS,4)}, s{S_T0} offen sc1")
e("s_mov_b64 exec, -1")
e("L_nocnt:")
e(f"s_add_u32 s{S_CB}, s28, s{S_T0}")
e(f"s_addc_u32 s{S_CB+1}, s29, 0")
e(f"s_lshl_b32 s{S_T0}, s{S_HEAD}, 2")
e(f"s_add_u32 s{S_DB}, s26, s{S_T0}")
e(f"s_addc_u32 s{S_DB+1}, s27, 0")
srd(SRD_X, 4, 5, 1280)
e(f"v_lshlrev_b32 v{T[3]}, 2, v{V_LANE}")
for j in range(5):
    e(f"buffer_load_dword v{XR+j}, v{T[3]}, {sr(SRD_X,4)}, 0 offen offset:{j*256}")
c("weight slice loads")
e(f"s_cmp_ge_u32 s{S_WAVE}, 6")
e("s_cbranch_scc1 L_w1")
srd(SRD_W, 10, 11, 640 * 12288)
e(f"s_cmp_ge_u32 s{S_WAVE}, 3")
e(f"s_cselect_b32 s{S_T1}, 1, 0")
e(f"s_mul_i32 s{S_T2}, s{S_T1}, 3")
e(f"s_sub_u32 s{S_T2}, s{S_WAVE}, s{S_T2}")
e(f"s_mul_i32 s{S_T0}, s{S_SPLIT}, 80")
e(f"s_mul_i32 s{S_NEW}, s{S_T1}, 40")
e(f"s_add_u32 s{S_T0}, s{S_T0}, s{S_NEW}")
e(f"s_mul_i32 s{S_NEW}, s{S_T0}, 12288")
e(f"s_mul_i32 s{S_AT}, s{S_HEAD}, 384")
e(f"s_add_u32 s{S_NEW}, s{S_NEW}, s{S_AT}")
e(f"s_lshl_b32 s{S_AT}, s{S_T2}, 7")
e(f"s_add_u32 s{S_NEW}, s{S_NEW}, s{S_AT}")
e(f"v_mul_u32_u24 v{T[4]}, 12288, v{T[0]}")
e(f"v_add_u32 v{T[4]}, v{T[4]}, v{T[1]}")
for k in range(5):
    e(f"buffer_load_dwordx4 {vr(WR+4*k,4)}, v{T[4]}, {sr(SRD_W,4)}, s{S_NEW} offen nt")
    if k < 4:
        e(f"s_add_u32 s{S_NEW}, s{S_NEW}, {8*12288}")
e(f"v_add_u32 v{T[5]}, s{S_T0}, v{T[0]}")
e("s_branch L_wdone")
e("L_w1:")
srd(SRD_W, 16, 17, 640 * 3072)
e(f"v_mul_u32_u24 v{T[5]}, 10923, v{V_LANE}")
e(f"v_lshrrev_b32 v{T[5]}, 16, v{T[5]}")
e(f"v_mul_u32_u24 v{T[6]}, 6, v{T[5]}")
e(f"v_sub_u32 v{T[6]}, v{V_LANE}, v{T[6]}")
e(f"v_mul_u32_u24 v{T[4]}, 3072, v{T[5]}")
e(f"v_lshl_add_u32 v{T[4]}, v{T[6]}, 4, v{T[4]}")
e(f"s_sub_u32 s{S_T1}, s{S_WAVE}, 6")
e(f"s_mul_i32 s{S_T0}, s{S_SPLIT}, 80")
e(f"s_mul_i32 s{S_NEW}, s{S_T1}, 40")
e(f"s_add_u32 s{S_T0}, s{S_T0}, s{S_NEW}")
e(f"s_mul_i32 s{S_NEW}, s{S_T0}, 3072")
e(f"s_mul_i32 s{S_AT}, s{S_HEAD}, 96")
e(f"s_add_u32 s{S_NEW}, s{S_NEW}, s{S_AT}")
for k in range(5):
    e(f"buffer_load_dwordx4 {vr(WR+4*k,4)}, v{T[4]}, {sr(SRD_W,4)}, s{S_NEW} offen nt")
    if k < 3:
        e(f"s_add_u32 s{S_NEW}, s{S_NEW}, {10*3072}")
e(f"v_mov_b32 v{V_M}, v{T[5]}")
e(f"v_add_u32 v{T[5]}, s{S_T0}, v{T[5]}")
e("L_wdone:")
srd(SRD_B1, 18, 19, 3072)
e(f"v_subrev_u32 v{T[4]}, 192, v0")
e(f"v_lshlrev_b32 v{T[4]}, 1, v{T[4]}")
e(f"s_mul_i32 s{S_AT}, s{S_HEAD}, 96")
e(f"buffer_load_ushort v{V_B1}, v{T[4]}, {sr(SRD_B1,4)}, s{S_AT} offen")
e(f"s_mul_i32 s{S_NEW}, s{S_HEAD}, 12582912")
srd_off(SRD_K, 6, 7, S_NEW, 12582912)
srd_off(SRD_V, 8, 9, S_NEW, 12582912)
srd(SRD_WO, 12, 13, 6144 * 1280)
srd(SRD_W2, 20, 21, 1536 * 1280)
srd(SRD_B2, 22, 23, 1280)
srd(SRD_OUT, 24, 25, 1280)
srd(SRD_DBG, 26, 27, 128)
e("s_barrier")
c("stage 1 prefetch: K0")
tk2off(S_NEW, S_TK[0])
load_kv(KB[0], SRD_K, S_NEW)
if STAMP:
    e("s_mov_b32 s4, s98")
    NST[0] = 1
c("---- layernorm ----")
e("s_waitcnt vmcnt(12)")
for j in range(5):
    e(f"v_lshlrev_b32 v{XF+2*j}, 16, v{XR+j}")
    e(f"v_and_b32 v{XF+2*j+1}, s{S_MASKHI}, v{XR+j}")
A0, A1, A2, A3, A4 = ACC, ACC + 1, ACC + 2, ACC + 3, ACC + 4
e(f"v_add_f32 v{A0}, v{XF}, v{XF+1}")
for j in range(2, 10):
    e(f"v_add_f32 v{A0}, v{A0}, v{XF+j}")
wave_allreduce("v_add_f32", A0, A1, [1, 2, 4, 8, 16, 32])
e(f"v_mul_f32 v{A0}, 0x3acccccd, v{A0}")
e(f"v_mov_b32 v{A1}, 0")
for j in range(10):
    e(f"v_sub_f32 v{A2}, v{XF+j}, v{A0}")
    e(f"v_fmac_f32 v{A1}, v{A2}, v{A2}")
wave_allreduce("v_add_f32", A1, A2, [1, 2, 4, 8, 16, 32])
e(f"v_mul_f32 v{A1}, 0x3acccccd, v{A1}")
bf16_round([A0, A1], A2)
e(f"v_add_f32 v{A1}, 0x3727c5ac, v{A1}")
bf16_round([A1], A2)
e(f"v_sqrt_f32 v{A1}, v{A1}")
nop(0)
bf16_round([A1], A2)
e(f"v_rcp_f32 v{A3}, v{A1}")
for j in range(10):
    e(f"v_sub_f32 v{XF+j}, v{XF+j}, v{A0}")
bf16_round([XF + j for j in range(10)], A2)
for j in range(10):
    e(f"v_mul_f32 v{A2}, v{XF+j}, v{A3}")
    e(f"v_fma_f32 v{A4}, -v{A2}, v{A1}, v{XF+j}")
    e(f"v_fma_f32 v{XF+j}, v{A4}, v{A3}, v{A2}")
bf16_round([XF + j for j in range(10)], A2)
e(f"s_mul_i32 s{S_NEW}, s{S_WAVE}, 2560")
e(f"v_lshlrev_b32 v{A2}, 3, v{V_LANE}")
e(f"v_add_u32 v{A2}, s{S_NEW}, v{A2}")
for j in range(5):
    e(f"ds_write_b64 v{A2}, {vr(XF+2*j,2)} offset:{LDS_XN + j*512}")
e(f"v_lshlrev_b32 v{T[5]}, 2, v{T[5]}")
e(f"v_add_u32 v{T[5]}, s{S_NEW}, v{T[5]}")
e("s_waitcnt lgkmcnt(0)")
e(f"s_cmp_ge_u32 s{S_WAVE}, 6")
e("s_cbranch_scc1 L_p_w1")
def products(n, stride):
    for k in range(n):
        e(f"ds_read_b32 v{XN+k}, v{T[5]} offset:{LDS_XN + stride*k}")
    for k in range(n):
        e(f"s_waitcnt vmcnt({11-k}) lgkmcnt({n-1-k})")
        for j in range(4):
            w = WR + 4 * k + j
            e(f"v_lshlrev_b32 v{U[0]}, 16, v{w}")
            e(f"v_and_b32 v{U[1]}, s{S_MASKHI}, v{w}")
            op = "v_mul_f32" if k == 0 else "v_fmac_f32"
            e(f"{op} v{ACC+2*j}, v{XN+k}, v{U[0]}")
            e(f"{op} v{ACC+2*j+1}, v{XN+k}, v{U[1]}")
products(5, 32)
reduce_hi([ACC + i for i in range(8)], (8,))
e(f"s_mul_i32 s{S_NEW}, s{S_T1}, 768")
e(f"s_lshl_b32 s{S_AT}, s{S_T2}, 8")
e(f"s_add_u32 s{S_NEW}, s{S_NEW}, s{S_AT}")
e(f"v_lshlrev_b32 v{T[4]}, 1, v{T[1]}")
e(f"v_lshrrev_b32 v{T[6]}, 4, v{V_LANE}")
e(f"v_lshl_add_u32 v{T[4]}, v{T[6]}, 3, v{T[4]}")
e(f"v_add_u32 v{T[4]}, s{S_NEW}, v{T[4]}")
e(f"ds_write_b64 v{T[4]}, {vr(ACC,2)} offset:{LDS_QPART}")
e("s_branch L_p_done")
e("L_p_w1:")
products(4, 40)
e(f"s_mul_i32 s{S_NEW}, s{S_T1}, 1920")
e(f"v_mul_u32_u24 v{T[4]}, 192, v{V_M}")
e(f"v_lshl_add_u32 v{T[4]}, v{T[6]}, 5, v{T[4]}")
e(f"v_add_u32 v{T[4]}, s{S_NEW}, v{T[4]}")
e(f"v_cmp_gt_u32 vcc, 60, v{V_LANE}")
e(f"s_and_saveexec_b64 {sr(S_EXEC,2)}, vcc")
e(f"ds_write_b128 v{T[4]}, {vr(ACC,4)} offset:{LDS_HPART}")
e(f"ds_write_b128 v{T[4]}, {vr(ACC+4,4)} offset:{LDS_HPART+16}")
e("s_mov_b64 exec, -1")
e("L_p_done:")
e("s_waitcnt lgkmcnt(0)")
e("s_barrier")
c("publish q/h partials")
e(f"v_lshlrev_b32 v{T[4]}, 2, v0")
e(f"s_lshl_b32 s{S_NEW}, s2, 10")
e(f"s_add_u32 s{S_NEW}, s{S_NEW}, {WS_QP}")
e(f"s_cmp_ge_u32 s{S_WAVE}, 4")
e("s_cbranch_scc1 L_pub_done")
e(f"s_cmp_eq_u32 s{S_WAVE}, 3")
e("s_cbranch_scc1 L_pub_h")
e(f"ds_read_b32 v{ACC}, v{T[4]} offset:{LDS_QPART}")
e(f"ds_read_b32 v{ACC+1}, v{T[4]} offset:{LDS_QPART+768}")
e("s_waitcnt lgkmcnt(0)")
e(f"v_add_f32 v{ACC}, v{ACC}, v{ACC+1}")
e(f"buffer_store_dword v{ACC}, v{T[4]}, {sr(SRD_WS,4)}, s{S_NEW} offen sc1")
e("s_branch L_pub_done")
e("L_pub_h:")
for n in range(20):
    e(f"ds_read_b32 v{ACC+n}, v{T[4]} offset:{LDS_HPART - 768 + 192*n}")
e("s_waitcnt lgkmcnt(0)")
for st in (10, 5):
    for n in range(st):
        e(f"v_add_f32 v{ACC+n}, v{ACC+n}, v{ACC+n+st}")
for n in range(1, 5):
    e(f"v_add_f32 v{ACC}, v{ACC}, v{ACC+n}")
e(f"buffer_store_dword v{ACC}, v{T[4]}, {sr(SRD_WS,4)}, s{S_NEW} offen sc1")
e("L_pub_done:")
e("s_waitcnt vmcnt(0)")
e("s_barrier")
stamp()
e(f"s_cmp_lg_u32 s{S_WAVE}, 0")
e("s_cbranch_scc1 L_arr_skip")
e(f"s_mov_b32 s{S_AT}, 1")
e(f"s_atomic_add s{S_AT}, {sr(S_DB,2)}, 0x0 glc")
e("L_arr_skip:")
c("stage 2 prefetch: V0")
tk2off(S_NEW, S_TK[0])
load_kv(VB[0], SRD_V, S_NEW)
e(f"s_cmp_lg_u32 s{S_WAVE}, 0")
e("s_cbranch_scc1 L_arr_done")
e("s_waitcnt lgkmcnt(0)")
e(f"s_add_u32 s{S_AT}, s{S_AT}, 1")
e("L_arr_poll:")
e(f"s_cmp_ge_u32 s{S_AT}, 8")
e("s_cbranch_scc1 L_arr_done")
e(f"s_mov_b32 s{S_AT}, 0")
e(f"s_atomic_add s{S_AT}, {sr(S_DB,2)}, 0x0 glc")
e("s_waitcnt lgkmcnt(0)")
e("s_branch L_arr_poll")
e("L_arr_done:")
e("s_barrier")
stamp()
e(f"s_cmp_ge_u32 s{S_WAVE}, 4")
e("s_cbranch_scc1 L_pl_skip")
e(f"s_lshl_b32 s{S_NEW}, s{S_HEAD}, 13")
e(f"s_add_u32 s{S_NEW}, s{S_NEW}, {WS_QP}")
for sp in range(8):
    e(f"buffer_load_dword v{PQ+sp}, v{T[4]}, {sr(SRD_WS,4)}, s{S_NEW} offen sc1")
    if sp < 7:
        e(f"s_add_u32 s{S_NEW}, s{S_NEW}, 1024")
e("L_pl_skip:")
e("s_barrier")
c("stage 3 prefetch: K1, V1")
tk2off(S_NEW, S_TK[1])
load_kv(KB[1], SRD_K, S_NEW)
load_kv(VB[1], SRD_V, S_NEW)
e(f"s_cmp_ge_u32 s{S_WAVE}, 4")
e("s_cbranch_scc1 L_q_done")
e("s_waitcnt vmcnt(12)")
for st in (4, 2, 1):
    for n in range(st):
        e(f"v_add_f32 v{PQ+n}, v{PQ+n}, v{PQ+n+st}")
e(f"v_cvt_pk_bf16_f32 v{T[5]}, v{PQ}, v{PQ}")
e(f"s_cmp_eq_u32 s{S_WAVE}, 3")
e("s_cbranch_scc1 L_q_h")
e(f"v_lshlrev_b32 v{T[6]}, 1, v0")
e(f"ds_write_b16 v{T[6]}, v{T[5]} offset:{LDS_QFIN}")
e("s_branch L_q_done")
e("L_q_h:")
e(f"v_lshlrev_b32 v{T[5]}, 16, v{T[5]}")
e(f"v_lshlrev_b32 v{T[6]}, 16, v{V_B1}")
e(f"v_add_f32 v{T[5]}, v{T[5]}, v{T[6]}")
bf16_round([T[5]], T[6])
e(f"v_mul_f32 v{T[6]}, v{T[5]}, v{T[5]}")
e(f"v_mov_b32 v{T[2]}, 1.0")
e(f"v_fmac_f32 v{T[2]}, 0x3d372713, v{T[6]}")
e(f"v_mul_f32 v{T[6]}, v{T[5]}, v{T[2]}")
e(f"v_mul_f32 v{T[6]}, {f2h(-2.0*math.sqrt(2.0/math.pi)*math.log2(math.e))}, v{T[6]}")
e(f"v_exp_f32 v{T[6]}, v{T[6]}")
nop(0)
e(f"v_add_f32 v{T[6]}, 1.0, v{T[6]}")
e(f"v_rcp_f32 v{T[6]}, v{T[6]}")
nop(0)
e(f"v_mul_f32 v{T[5]}, v{T[5]}, v{T[6]}")
bf16_round([T[5]], T[6])
e(f"ds_write_b32 v{T[4]}, v{T[5]} offset:{LDS_HFIN - 768}")
e("L_q_done:")
e("s_waitcnt lgkmcnt(0)")
e("s_barrier")
for t in range(3):
    e(f"ds_read_b128 {vr(Q+4*t,4)}, v{T[1]} offset:{LDS_QFIN + t*128}")
for a in range(24):
    e(f"v_mov_b32 v{ACC+a}, 0")
e(f"v_mov_b32 v{V_M}, 0xff800000")
e(f"v_mov_b32 v{V_L}, 0")
e("s_setprio 0")
e("s_waitcnt lgkmcnt(0)")
stamp()

def batch(b):
    kb, vb = KB[b], VB[b]
    e(f"s_cmp_ge_u32 s{S_TK[b]}, {NTK}")
    e("s_cbranch_scc1 L_done")
    e(f"s_mov_b32 s{S_AT}, 1")
    e(f"s_atomic_add s{S_AT}, {sr(S_CB,2)}, 0x0 glc")
    e("s_waitcnt vmcnt(18)")
    for r in range(12):
        for i in range(2):
            src2 = "0" if r == 0 else f"v{SC[i]}"
            e(f"v_dot2_f32_bf16 v{SC[i]}, v{kb+i*12+r}, v{Q+r}, {src2}")
    e("s_waitcnt lgkmcnt(0)")
    e(f"s_add_u32 s{S_TK[b]}, s{S_AT}, 128")
    tk2off(S_NEW, S_TK[b])
    load_kv(kb, SRD_K, S_NEW)
    for ctrl in ("quad_perm:[1,0,3,2]", "quad_perm:[2,3,0,1]", "row_half_mirror"):
        for i in range(2):
            dpp("v_add_f32", SC[i], SC[i], SC[i], ctrl)
        nop(0)
    bf16_round(SC, T[2])
    for i in range(2):
        e(f"v_mul_f32 v{SC[i]}, s{S_SCALE}, v{SC[i]}")
    bf16_round(SC, T[2])
    for i in range(2):
        e(f"v_mul_f32 v{SC[i]}, s{S_LOG2E}, v{SC[i]}")
    e(f"v_max3_f32 v{T[2]}, v{V_M}, v{SC[0]}, v{SC[1]}")
    e(f"v_sub_f32 v{T[3]}, v{V_M}, v{T[2]}")
    for i in range(2):
        e(f"v_sub_f32 v{SC[i]}, v{SC[i]}, v{T[2]}")
    e(f"v_exp_f32 v{T[3]}, v{T[3]}")
    for i in range(2):
        e(f"v_exp_f32 v{SC[i]}, v{SC[i]}")
    e(f"v_mov_b32 v{V_M}, v{T[2]}")
    e(f"v_fma_f32 v{V_L}, v{V_L}, v{T[3]}, v{SC[0]}")
    e(f"v_add_f32 v{V_L}, v{V_L}, v{SC[1]}")
    for a in range(24):
        e(f"v_mul_f32 v{ACC+a}, v{ACC+a}, v{T[3]}")
    e("s_waitcnt vmcnt(18)")
    for i in range(2):
        p = SC[i]
        for r in range(12):
            w = vb + i * 12 + r
            ta, tb = U[(2 * r) % 6], U[(2 * r + 1) % 6]
            e(f"v_lshlrev_b32 v{ta}, 16, v{w}")
            e(f"v_and_b32 v{tb}, s{S_MASKHI}, v{w}")
            e(f"v_fmac_f32 v{ACC+2*r}, v{p}, v{ta}")
            e(f"v_fmac_f32 v{ACC+2*r+1}, v{p}, v{tb}")
    load_kv(vb, SRD_V, S_NEW)

e("L_loop:")
batch(0)
batch(1)
e("s_branch L_loop")
e("L_done:")
stamp()
c("wo / w2 row slices (registers above the K/V buffers)")
WOR = 160
W2R = WOR + 16
V_GRP, V_CH = WOR + 24, WOR + 25
e(f"v_mul_u32_u24 v{V_GRP}, 3277, v0")
e(f"v_lshrrev_b32 v{V_GRP}, 18, v{V_GRP}")
e(f"v_mul_u32_u24 v{V_CH}, 80, v{V_GRP}")
e(f"v_sub_u32 v{V_CH}, v0, v{V_CH}")
e(f"v_mul_u32_u24 v{T[4]}, 5120, v{V_GRP}")
e(f"v_lshl_add_u32 v{T[4]}, v{V_CH}, 4, v{T[4]}")
e(f"s_mul_i32 s{S_T0}, s2, {24*1280}")
for p in range(4):
    e(f"buffer_load_dwordx4 {vr(WOR+4*p,4)}, v{T[4]}, {sr(SRD_WO,4)}, s{S_T0} offen offset:{1280*p} nt")
e(f"v_mul_u32_u24 v{T[4]}, 1280, v{V_GRP}")
e(f"v_lshl_add_u32 v{T[4]}, v{V_CH}, 4, v{T[4]}")
e(f"s_mul_i32 s{S_T0}, s2, {6*1280}")
e(f"buffer_load_dwordx4 {vr(W2R,4)}, v{T[4]}, {sr(SRD_W2,4)}, s{S_T0} offen nt")
c("---- tail: wave-level combine ----")
e(f"v_mov_b32 v{T[0]}, v{V_M}")
wave_allreduce("v_max_f32", T[0], T[1], [8, 16, 32])
e(f"v_sub_f32 v{T[1]}, v{V_M}, v{T[0]}")
e(f"v_exp_f32 v{T[1]}, v{T[1]}")
nop(0)
for a in range(24):
    e(f"v_mul_f32 v{ACC+a}, v{ACC+a}, v{T[1]}")
e(f"v_mul_f32 v{T[1]}, v{V_L}, v{T[1]}")
wave_allreduce("v_add_f32", T[1], T[2], [8, 16, 32])
reduce_hi([ACC + i for i in range(24)])
e(f"s_mul_i32 s{S_T0}, s{S_WAVE}, 800")
e(f"v_and_b32 v{T[4]}, 7, v{V_LANE}")
e(f"v_mul_u32_u24 v{T[4]}, 96, v{T[4]}")
e(f"v_lshrrev_b32 v{T[5]}, 4, v{V_LANE}")
e(f"v_mul_u32_u24 v{T[6]}, 24, v{T[5]}")
e(f"v_add3_u32 v{T[4]}, v{T[4]}, v{T[6]}, s{S_T0}")
for i in range(3):
    e(f"ds_write_b64 v{T[4]}, {vr(ACC+2*i,2)} offset:{LDS_PART + i*8}")
e(f"s_lshl_b32 s{S_T0}, s{S_WAVE}, 3")
e(f"v_mov_b32 v{T[5]}, s{S_T0}")
e(f"ds_write_b64 v{T[5]}, {vr(T[0],2)} offset:{LDS_ML}")
e("s_waitcnt lgkmcnt(0)")
e("s_barrier")
stamp()
e(f"s_cmp_ge_u32 s{S_WAVE}, 3")
e("s_cbranch_scc1 L_join1")
ML = ACC
for i in range(4):
    e(f"ds_read_b128 {vr(ML+4*i,4)}, v{V_ZERO} offset:{LDS_ML + 16*i}")
e(f"v_lshlrev_b32 v{T[4]}, 2, v0")
OP = 28
for w in range(8):
    e(f"ds_read_b32 v{OP+w}, v{T[4]} offset:{LDS_PART + w*800}")
e(f"v_mul_u32_u24 v{T[5]}, 2731, v0")
e(f"v_lshrrev_b32 v{T[5]}, 16, v{T[5]}")
e(f"v_mul_u32_u24 v{T[6]}, 24, v{T[5]}")
e(f"v_sub_u32 v{T[6]}, v0, v{T[6]}")
e(f"v_lshrrev_b32 v{T[2]}, 3, v{T[6]}")
e(f"v_lshlrev_b32 v{T[2]}, 6, v{T[2]}")
e(f"v_and_b32 v{T[6]}, 7, v{T[6]}")
e(f"v_lshlrev_b32 v{T[5]}, 3, v{T[5]}")
e(f"v_add3_u32 v{T[2]}, v{T[2]}, v{T[5]}, v{T[6]}")
e(f"v_lshlrev_b32 v{T[2]}, 2, v{T[2]}")
e("s_waitcnt lgkmcnt(0)")
e(f"v_max3_f32 v{T[0]}, v{ML}, v{ML+2}, v{ML+4}")
e(f"v_max3_f32 v{T[0]}, v{T[0]}, v{ML+6}, v{ML+8}")
e(f"v_max3_f32 v{T[0]}, v{T[0]}, v{ML+10}, v{ML+12}")
e(f"v_max_f32 v{T[0]}, v{T[0]}, v{ML+14}")
for w in range(8):
    e(f"v_sub_f32 v{ML+2*w}, v{ML+2*w}, v{T[0]}")
for w in range(8):
    e(f"v_exp_f32 v{ML+2*w}, v{ML+2*w}")
nop(0)
e(f"v_mul_f32 v{T[1]}, v{ML}, v{ML+1}")
e(f"v_mul_f32 v{T[3]}, v{ML}, v{OP}")
for w in range(1, 8):
    e(f"v_fmac_f32 v{T[1]}, v{ML+2*w}, v{ML+2*w+1}")
    e(f"v_fmac_f32 v{T[3]}, v{ML+2*w}, v{OP+w}")
e(f"s_lshl_b32 s{S_T0}, s2, 10")
e(f"s_add_u32 s{S_T0}, s{S_T0}, {WS_P}")
e(f"buffer_store_dword v{T[3]}, v{T[2]}, {sr(SRD_WS,4)}, s{S_T0} offen sc1")
e(f"s_cmp_lg_u32 s{S_WAVE}, 0")
e("s_cbranch_scc1 L_join1")
e("s_mov_b64 exec, 1")
e(f"buffer_store_dwordx2 {vr(T[0],2)}, v{V_ZERO}, {sr(SRD_WS,4)}, s{S_T0} offen offset:768 sc1")
e("s_mov_b64 exec, -1")
c("wave 0 polls the 8 partials of this head")
e(f"s_lshl_b32 s{S_T0}, s{S_HEAD}, 13")
e(f"s_add_u32 s{S_T0}, s{S_T0}, {WS_P}")
e(f"v_min_u32 v{T[4]}, 23, v0")
e(f"s_mul_i32 s{S_T1}, s{S_SPLIT}, 24")
e(f"v_add_u32 v{T[4]}, s{S_T1}, v{T[4]}")
e(f"v_lshlrev_b32 v{T[4]}, 2, v{T[4]}")
PO = 192
PM = 200
e("L_poll1:")
e(f"s_mov_b32 s{S_T1}, s{S_T0}")
for sp in range(8):
    e(f"buffer_load_dword v{PO+sp}, v{T[4]}, {sr(SRD_WS,4)}, s{S_T1} offen sc1")
    e(f"buffer_load_dwordx2 {vr(PM+2*sp,2)}, v{V_ZERO}, {sr(SRD_WS,4)}, s{S_T1} offen offset:768 sc1")
    if sp < 7:
        e(f"s_add_u32 s{S_T1}, s{S_T1}, 1024")
e("s_waitcnt vmcnt(0)")
e(f"v_max3_u32 v{T[0]}, v{PO}, v{PO+1}, v{PO+2}")
for k in range(3, 23, 2):
    e(f"v_max3_u32 v{T[0]}, v{T[0]}, v{PO+k}, v{PO+k+1}")
e(f"v_max_u32 v{T[0]}, v{T[0]}, v{PO+23}")
e(f"v_cmp_eq_u32 vcc, -1, v{T[0]}")
nop(4)
e("s_cbranch_vccz L_poll1_done")
e("s_sleep 1")
e("s_branch L_poll1")
e("L_poll1_done:")
e(f"v_max3_f32 v{T[0]}, v{PM}, v{PM+2}, v{PM+4}")
e(f"v_max3_f32 v{T[0]}, v{T[0]}, v{PM+6}, v{PM+8}")
e(f"v_max3_f32 v{T[0]}, v{T[0]}, v{PM+10}, v{PM+12}")
e(f"v_max_f32 v{T[0]}, v{T[0]}, v{PM+14}")
for sp in range(8):
    e(f"v_sub_f32 v{PM+2*sp}, v{PM+2*sp}, v{T[0]}")
for sp in range(8):
    e(f"v_exp_f32 v{PM+2*sp}, v{PM+2*sp}")
nop(0)
e(f"v_mul_f32 v{T[1]}, v{PM}, v{PM+1}")
e(f"v_mul_f32 v{T[2]}, v{PM}, v{PO}")
for sp in range(1, 8):
    e(f"v_fmac_f32 v{T[1]}, v{PM+2*sp}, v{PM+2*sp+1}")
    e(f"v_fmac_f32 v{T[2]}, v{PM+2*sp}, v{PO+sp}")
e(f"v_rcp_f32 v{T[3]}, v{T[1]}")
nop(0)
e(f"v_mul_f32 v{T[5]}, v{T[2]}, v{T[3]}")
e(f"v_fma_f32 v{T[6]}, -v{T[5]}, v{T[1]}, v{T[2]}")
e(f"v_fma_f32 v{T[5]}, v{T[6]}, v{T[3]}, v{T[5]}")
bf16_round([T[5]], T[6])
e(f"v_lshlrev_b32 v{T[4]}, 2, v0")
e(f"ds_write_b32 v{T[4]}, v{T[5]} offset:{LDS_O}")
e("L_join1:")
e("s_waitcnt vmcnt(0) lgkmcnt(0)")
e("s_barrier")
stamp()
c("y part = o[24 rows] @ wo rows ; z part = h[6] @ w2 rows")
OV = 64
YY = 72
HR = 70
e(f"v_lshlrev_b32 v{T[4]}, 4, v{V_GRP}")
e(f"ds_read_b128 {vr(OV,4)}, v{T[4]} offset:{LDS_O}")
e(f"s_mul_i32 s{S_T0}, s{S_SPLIT}, 24")
e(f"v_lshl_add_u32 v{T[4]}, v{V_GRP}, 2, s{S_T0}")
e(f"ds_read_b32 v{HR}, v{T[4]} offset:{LDS_HFIN}")
e("s_waitcnt lgkmcnt(0)")
for j in range(4):
    w = W2R + j
    e(f"v_lshlrev_b32 v{U[0]}, 16, v{w}")
    e(f"v_and_b32 v{U[1]}, s{S_MASKHI}, v{w}")
    e(f"v_mul_f32 v{YY+8+2*j}, v{HR}, v{U[0]}")
    e(f"v_mul_f32 v{YY+8+2*j+1}, v{HR}, v{U[1]}")
for p in range(4):
    for j in range(4):
        w = WOR + 4 * p + j
        e(f"v_lshlrev_b32 v{U[0]}, 16, v{w}")
        e(f"v_and_b32 v{U[1]}, s{S_MASKHI}, v{w}")
        op = "v_mul_f32" if p == 0 else "v_fmac_f32"
        e(f"{op} v{YY+2*j}, v{OV+p}, v{U[0]}")
        e(f"{op} v{YY+2*j+1}, v{OV+p}, v{U[1]}")
e(f"v_mul_u32_u24 v{T[2]}, 2560, v{V_GRP}")
e(f"v_lshl_add_u32 v{T[2]}, v{V_CH}, 5, v{T[2]}")
e(f"v_cmp_gt_u32 vcc, 480, v0")
e(f"s_and_saveexec_b64 {sr(S_EXEC,2)}, vcc")
e(f"ds_write_b128 v{T[2]}, {vr(YY,4)} offset:{LDS_Y}")
e(f"ds_write_b128 v{T[2]}, {vr(YY+4,4)} offset:{LDS_Y+16}")
e(f"ds_write_b128 v{T[2]}, {vr(YY+8,4)} offset:{LDS_Y+15360}")
e(f"ds_write_b128 v{T[2]}, {vr(YY+12,4)} offset:{LDS_Y+15360+16}")
e("s_mov_b64 exec, -1")
e("s_waitcnt lgkmcnt(0)")
e("s_barrier")
e(f"s_cmp_ge_u32 s{S_WAVE}, 5")
e("s_cbranch_scc1 L_pub2_done")
e(f"v_cmp_le_u32 vcc, 160, v0")
e(f"v_mov_b32 v{T[3]}, 0")
e(f"v_mov_b32 v{T[5]}, {15360-2560}")
e(f"v_cndmask_b32 v{T[4]}, v{T[3]}, v{T[5]}, vcc")
e(f"v_lshl_add_u32 v{T[4]}, v0, 4, v{T[4]}")
for g in range(6):
    e(f"ds_read_b128 {vr(YY+4*g,4)}, v{T[4]} offset:{LDS_Y + 2560*g}")
e(f"v_mov_b32 v{T[5]}, {WS_Z-WS_Y-2560}")
e(f"v_cndmask_b32 v{T[2]}, v{T[3]}, v{T[5]}, vcc")
e(f"v_lshl_add_u32 v{T[2]}, v0, 4, v{T[2]}")
e(f"s_mul_i32 s{S_T0}, s2, 2560")
e(f"s_add_u32 s{S_T0}, s{S_T0}, {WS_Y}")
e("s_waitcnt lgkmcnt(0)")
for g in range(1, 6):
    for j in range(4):
        e(f"v_add_f32 v{YY+j}, v{YY+j}, v{YY+4*g+j}")
e(f"buffer_store_dwordx4 {vr(YY,4)}, v{T[2]}, {sr(SRD_WS,4)}, s{S_T0} offen sc1")
e("L_pub2_done:")
def stamp_store():
    if STAMP:
        for i in range(8):
            e(f"v_mov_b32 v{40+i}, s{4+2*i}")
        e(f"s_lshl_b32 s{S_T0}, s2, 3")
        e(f"s_add_u32 s{S_T0}, s{S_T0}, s{S_WAVE}")
        e(f"s_lshl_b32 s{S_T0}, s{S_T0}, 5")
        e(f"s_add_u32 s{S_T0}, s{S_T0}, {4<<20}")
        e(f"buffer_store_dwordx4 v[40:43], v{V_ZERO}, {sr(SRD_WS,4)}, s{S_T0} offen")
        e(f"buffer_store_dwordx4 v[44:47], v{V_ZERO}, {sr(SRD_WS,4)}, s{S_T0} offen offset:16")
if STAMP:
    e("s_mov_b32 s18, 0")
stamp_store()
c("final reducers: wg<40 -> columns wg*16 .. +16")
e("s_cmp_ge_u32 s2, 40")
e("s_cbranch_scc1 L_exit")
e(f"v_lshrrev_b32 v{T[2]}, 3, v0")
e(f"v_mul_u32_u24 v{T[2]}, 2560, v{T[2]}")
e(f"v_bfe_u32 v{T[3]}, v0, 2, 1")
e(f"v_mul_u32_u24 v{T[3]}, {WS_Z-WS_Y}, v{T[3]}")
e(f"v_and_b32 v{T[4]}, 3, v0")
e(f"v_lshlrev_b32 v{T[4]}, 4, v{T[4]}")
e(f"v_add3_u32 v{T[2]}, v{T[2]}, v{T[3]}, v{T[4]}")
e(f"s_lshl_b32 s{S_T0}, s2, 6")
e(f"s_lshl_b32 s{S_NEW}, s2, 5")
e(f"s_add_u32 s{S_T0}, s{S_T0}, {WS_Y}")
e(f"v_lshlrev_b32 v{T[5]}, 1, v0")
e(f"v_and_b32 v{T[6]}, 31, v0")
e(f"v_lshlrev_b32 v{T[6]}, 2, v{T[6]}")
FX = 100
e(f"buffer_load_ushort v{FX}, v{T[5]}, {sr(SRD_X,4)}, s{S_NEW} offen")
e(f"buffer_load_ushort v{FX+1}, v{T[5]}, {sr(SRD_B2,4)}, s{S_NEW} offen")
e("L_poll2:")
e(f"buffer_load_dword v{FX+2}, v{T[6]}, {sr(SRD_DBG,4)}, 0 offen sc1")
e(f"s_mov_b32 s{S_T1}, s{S_T0}")
for i in range(4):
    e(f"buffer_load_dwordx4 {vr(OV+4*i,4)}, v{T[2]}, {sr(SRD_WS,4)}, s{S_T1} offen sc1")
    if i < 3:
        e(f"s_add_u32 s{S_T1}, s{S_T1}, {64*2560}")
e("s_waitcnt vmcnt(0)")
e(f"v_max3_u32 v{T[0]}, v{OV}, v{OV+1}, v{OV+2}")
for k in range(3, 15, 2):
    e(f"v_max3_u32 v{T[0]}, v{T[0]}, v{OV+k}, v{OV+k+1}")
e(f"v_max_u32 v{T[0]}, v{T[0]}, v{OV+15}")
e(f"v_cmp_eq_u32 vcc, -1, v{T[0]}")
e(f"v_cmp_ne_u32 {sr(S_EXEC2,2)}, 8, v{FX+2}")
nop(4)
e(f"s_or_b64 vcc, vcc, {sr(S_EXEC2,2)}")
e("s_cbranch_scc0 L_poll2_done")
e("s_sleep 1")
e("s_branch L_poll2")
e("L_poll2_done:")
for i in range(1, 4):
    for j in range(4):
        e(f"v_add_f32 v{OV+j}, v{OV+j}, v{OV+4*i+j}")
reduce_hi([OV + i for i in range(4)], (8,))
e(f"v_and_b32 v{T[3]}, 7, v0")
e(f"v_lshlrev_b32 v{T[3]}, 4, v{T[3]}")
e(f"v_lshrrev_b32 v{T[4]}, 4, v{V_LANE}")
e(f"v_lshl_add_u32 v{T[3]}, v{T[4]}, 2, v{T[3]}")
e(f"s_lshl_b32 s{S_T1}, s{S_WAVE}, 7")
e(f"v_add_u32 v{T[3]}, s{S_T1}, v{T[3]}")
e(f"ds_write_b32 v{T[3]}, v{OV}")
e("s_waitcnt lgkmcnt(0)")
e("s_barrier")
stamp()
stamp_store()
e(f"v_cmp_gt_u32 vcc, 16, v0")
e(f"s_and_saveexec_b64 {sr(S_EXEC,2)}, vcc")
e("s_cbranch_execz L_exit")
e(f"v_lshlrev_b32 v{T[3]}, 2, v0")
for w in range(8):
    e(f"ds_read_b32 v{OV+w}, v{T[3]} offset:{128*w}")
    e(f"ds_read_b32 v{OV+8+w}, v{T[3]} offset:{128*w+64}")
e("s_waitcnt lgkmcnt(0)")
for st in (4, 2, 1):
    for w in range(st):
        e(f"v_add_f32 v{OV+w}, v{OV+w}, v{OV+w+st}")
        e(f"v_add_f32 v{OV+8+w}, v{OV+8+w}, v{OV+8+w+st}")
ZZ = OV + 8
bf16_round([OV, ZZ], T[0])
e(f"v_lshlrev_b32 v{FX+1}, 16, v{FX+1}")
e(f"v_lshlrev_b32 v{FX}, 16, v{FX}")
e(f"v_add_f32 v{ZZ}, v{ZZ}, v{FX+1}")
bf16_round([ZZ], T[0])
e(f"v_mul_f32 v{ZZ+1}, {f2h(-math.log2(math.e))}, v{ZZ}")
e(f"v_exp_f32 v{ZZ+1}, v{ZZ+1}")
nop(0)
e(f"v_add_f32 v{ZZ+1}, 1.0, v{ZZ+1}")
e(f"v_rcp_f32 v{ZZ+1}, v{ZZ+1}")
nop(0)
e(f"v_mul_f32 v{ZZ}, v{ZZ}, v{ZZ+1}")
bf16_round([ZZ], T[0])
e(f"v_mul_f32 v{OV}, v{OV}, v{ZZ}")
bf16_round([OV], T[0])
e(f"v_add_f32 v{OV}, v{OV}, v{FX}")
e(f"v_cvt_pk_bf16_f32 v{OV}, v{OV}, v{OV}")
e(f"buffer_store_short v{OV}, v{T[5]}, {sr(SRD_OUT,4)}, s{S_NEW} offen")
e("L_exit:")
e("s_endpgm")
L.append(f"""
.section .rodata,"a"
.p2align 6
.amdhsa_kernel {KN}
  .amdhsa_next_free_vgpr 256
  .amdhsa_next_free_sgpr 102
  .amdhsa_accum_offset 256
  .amdhsa_group_segment_fixed_size 0
  .amdhsa_kernarg_size 104
  .amdhsa_user_sgpr_count 2
  .amdhsa_user_sgpr_kernarg_segment_ptr 1
  .amdhsa_system_sgpr_workgroup_id_x 1
  .amdhsa_float_denorm_mode_32 3
.end_amdhsa_kernel
""")
open(OUT, "w").write("\n".join(L) + "\n")
print("wrote", OUT, len(L), "lines")
```

```python
import sys, os, struct, math

NAME = "recurrent_scan__mha_block_cached__dense_activation_gelu__decode"
OUT = sys.argv[1] if len(sys.argv) > 1 else f"cdna_kernels/{NAME}.s"
STAMP = os.environ.get("STAMP", "") == "1"
KVF = os.environ.get("KVF", " nt")
ROT = int(os.environ.get("ROT", "21"))
KN = NAME + "_kernel"

L = []
def e(s=""):
    L.append("    " + s if s and not s.endswith(":") else s)
def c(s):
    L.append("    ; " + s)
def nop(n):
    e(f"s_nop {n}")
def vr(a, n):
    return f"v[{a}:{a+n-1}]"
def sr(a, n):
    return f"s[{a}:{a+n-1}]"
def f2h(x):
    return hex(struct.unpack("<I", struct.pack("<f", x))[0])

WS_CNT = 0
WS_P = 65536
WS_Y = 327680
WS_Z = 983040
WS_QP = 1638400
WS_BYTES = 8 << 20
LOG2E = 0x3fb8aa3b
SCALE = 0x3d93cd3a
LDS_BYTES = 43008

header = f"""; Kernarg layout for this problem (104 bytes, ptrs only, base s[0:1]):
; @launch grid=(256,1,1) block=(512,1,1) lds={LDS_BYTES}
.amdgcn_target "amdgcn-amd-amdhsa--gfx950"
.text
.globl {KN}
.p2align 8
.type {KN},@function
{KN}:"""

def srd(d, lo, hi, nbytes):
    e(f"s_mov_b32 s{d}, s{lo}")
    e(f"s_and_b32 s{d+1}, s{hi}, 0xffff")
    e(f"s_mov_b32 s{d+2}, {nbytes}")
    e(f"s_mov_b32 s{d+3}, 0x00020000")

def srd_off(d, lo, hi, soff, nbytes):
    e(f"s_add_u32 s{d}, s{lo}, s{soff}")
    e(f"s_addc_u32 s{d+1}, s{hi}, 0")
    e(f"s_and_b32 s{d+1}, s{d+1}, 0xffff")
    e(f"s_mov_b32 s{d+2}, {nbytes}")
    e(f"s_mov_b32 s{d+3}, 0x00020000")

def dpp(op, d, a, b, ctrl):
    e(f"{op}_dpp v{d}, v{a}, v{b} {ctrl} row_mask:0xf bank_mask:0xf")

def wave_allreduce(op, v, tmp, levels):
    for lv in levels:
        nop(1)
        if lv == 1:
            dpp(op, v, v, v, "quad_perm:[1,0,3,2]")
        elif lv == 2:
            dpp(op, v, v, v, "quad_perm:[2,3,0,1]")
        elif lv == 4:
            dpp(op, v, v, v, "row_half_mirror")
        elif lv == 8:
            dpp(op, v, v, v, "row_ror:8")
        elif lv == 16:
            e(f"v_mov_b32 v{tmp}, v{v}")
            nop(1)
            e(f"v_permlane16_swap_b32 v{v}, v{tmp}")
            e(f"{op} v{v}, v{v}, v{tmp}")
        elif lv == 32:
            e(f"v_mov_b32 v{tmp}, v{v}")
            nop(1)
            e(f"v_permlane32_swap_b32 v{v}, v{tmp}")
            e(f"{op} v{v}, v{v}, v{tmp}")

def reduce_hi(regs, extra_ror=(8,)):
    n = len(regs)
    h = n // 2
    nop(1)
    for i in range(h):
        e(f"v_permlane32_swap_b32 v{regs[i]}, v{regs[i+h]}")
    for i in range(h):
        e(f"v_add_f32 v{regs[i]}, v{regs[i]}, v{regs[i+h]}")
    q = n // 4
    nop(1)
    for i in range(q):
        e(f"v_permlane16_swap_b32 v{regs[i]}, v{regs[i+q]}")
    for i in range(q):
        e(f"v_add_f32 v{regs[i]}, v{regs[i]}, v{regs[i+q]}")
    for ror in extra_ror:
        nop(1)
        for i in range(q):
            dpp("v_add_f32", regs[i], regs[i], regs[i], f"row_ror:{ror}")

def bf16_round(v_list, tmp):
    for i in range(0, len(v_list), 2):
        a = v_list[i]
        b = v_list[i + 1] if i + 1 < len(v_list) else v_list[i]
        e(f"v_cvt_pk_bf16_f32 v{tmp}, v{a}, v{b}")
        e(f"v_lshlrev_b32 v{a}, 16, v{tmp}")
        if b != a:
            e(f"v_and_b32 v{b}, 0xffff0000, v{tmp}")

L.append(header)
SRD_K, SRD_V, SRD_WS, SRD_X, SRD_W, SRD_WO, SRD_W2, SRD_B2, SRD_OUT, SRD_B1, SRD_DBG = 32, 36, 40, 44, 48, 52, 56, 60, 64, 68, 72
S_WAVE, S_HEAD, S_SPLIT, S_T0, S_T1, S_NEW, S_AT, S_ROT = 76, 77, 78, 79, 80, 81, 82, 83
S_CB, S_DB = 84, 86
S_TK = [88, 89]
S_MASKHI, S_LOG2E, S_SCALE = 90, 91, 92
S_T2 = 93
S_EXEC, S_EXEC2 = 94, 96
V_KV, V_LANE, V_M, V_L = 1, 2, 3, 4
T = [6, 7, 8, 9, 10, 11, 5]
ACC = 12
Q = 36
V_ZERO = 52
SC = [53, 54]
U = [58 + i for i in range(6)]
KB = [64, 112]
VB = [88, 136]
WR = 160
XR = 180
XF = 186
XN = 196
PQ = 204
V_B1 = 202
NTK = 2048
TKB = 6144
LDS_XN = 0
LDS_QPART = 20480
LDS_HPART = 22016
LDS_QFIN = 25856
LDS_HFIN = 40960
LDS_PART = 0
LDS_ML = 6400
LDS_O = 7168
LDS_Y = 8192

NST = [0]
def stamp():
    if STAMP:
        e("s_waitcnt lgkmcnt(0)")
        e(f"s_memrealtime s[{4+2*NST[0]}:{5+2*NST[0]}]")
        e("s_waitcnt lgkmcnt(0)")
        NST[0] += 1

def load_kv(buf, srdreg, soff):
    for i in range(2):
        for t in range(3):
            e(f"buffer_load_dwordx4 {vr(buf + (i*3+t)*4, 4)}, v{V_KV}, {sr(srdreg,4)}, s{soff} offen offset:{i*3072+t*128}{KVF}")

def tk2off(d, tk):
    e(f"s_add_u32 s{d}, s{tk}, s{S_ROT}")
    e(f"s_and_b32 s{d}, s{d}, {NTK-1}")
    e(f"s_mul_i32 s{d}, s{d}, {TKB}")
    e(f"s_cmp_lt_u32 s{tk}, {NTK}")
    e(f"s_cselect_b32 s{d}, s{d}, 0x7f000000")

e("s_cmp_ge_u32 s2, 256")
e("s_cbranch_scc1 L_exit")
e("s_setprio 3")
if STAMP:
    e("s_memrealtime s[98:99]")
e("s_load_dwordx16 s[4:19], s[0:1], 0")
e("s_load_dwordx8 s[20:27], s[0:1], 64")
e("s_load_dwordx2 s[28:29], s[0:1], 96")
e(f"v_and_b32 v{V_LANE}, 63, v0")
e(f"v_lshrrev_b32 v{T[0]}, 6, v0")
nop(0)
e(f"v_readfirstlane_b32 s{S_WAVE}, v{T[0]}")
e(f"s_lshr_b32 s{S_HEAD}, s2, 3")
e(f"s_and_b32 s{S_SPLIT}, s2, 7")
e(f"s_mov_b32 s{S_MASKHI}, 0xffff0000")
e(f"s_mov_b32 s{S_LOG2E}, {LOG2E:#x}")
e(f"s_mov_b32 s{S_SCALE}, {SCALE:#x}")
e(f"v_lshrrev_b32 v{T[0]}, 3, v{V_LANE}")
e(f"v_and_b32 v{T[1]}, 7, v{V_LANE}")
e(f"v_lshlrev_b32 v{T[1]}, 4, v{T[1]}")
e(f"v_mul_u32_u24 v{V_KV}, 384, v{T[0]}")
e(f"v_add_u32 v{V_KV}, v{V_KV}, v{T[1]}")
e(f"v_mov_b32 v{V_ZERO}, 0")
e(f"s_mul_i32 s{S_ROT}, s{S_HEAD}, {ROT}")
e(f"s_lshl_b32 s{S_TK[0]}, s{S_SPLIT}, 3")
e(f"s_add_u32 s{S_TK[0]}, s{S_TK[0]}, s{S_WAVE}")
e(f"s_add_u32 s{S_TK[1]}, s{S_TK[0]}, 64")
c("sentinel clear addresses: t<64 P, <224 Y, <384 Z")
e(f"s_lshl_b32 s{S_T0}, s2, 10")
e(f"s_add_u32 s{S_T0}, s{S_T0}, {WS_P}")
e(f"s_mul_i32 s{S_T1}, s2, 2560")
e(f"s_add_u32 s{S_T2}, s{S_T1}, {WS_Z - 224*16}")
e(f"s_add_u32 s{S_T1}, s{S_T1}, {WS_Y - 64*16}")
e(f"v_mov_b32 v{T[2]}, s{S_T0}")
e(f"v_mov_b32 v{T[3]}, s{S_T1}")
e(f"v_mov_b32 v{T[4]}, s{S_T2}")
e(f"v_cmp_le_u32 vcc, 64, v0")
nop(1)
e(f"v_cndmask_b32 v{T[2]}, v{T[2]}, v{T[3]}, vcc")
e(f"v_cmp_le_u32 vcc, 224, v0")
nop(1)
e(f"v_cndmask_b32 v{T[2]}, v{T[2]}, v{T[4]}, vcc")
e(f"v_lshl_add_u32 v{T[2]}, v0, 4, v{T[2]}")
for i in range(4):
    e(f"v_mov_b32 v{ACC+i}, -1")
e("s_waitcnt lgkmcnt(0)")
srd(SRD_WS, 28, 29, WS_BYTES)
e(f"v_cmp_gt_u32 vcc, 384, v0")
e(f"s_and_saveexec_b64 {sr(S_EXEC,2)}, vcc")
e("s_cbranch_execz L_noclr")
e(f"buffer_store_dwordx4 {vr(ACC,4)}, v{T[2]}, {sr(SRD_WS,4)}, 0 offen sc1")
e("L_noclr:")
e("s_mov_b64 exec, -1")
e(f"s_lshl_b32 s{S_T0}, s{S_HEAD}, 8")
e(f"s_or_b32 s{S_T1}, s{S_SPLIT}, s{S_WAVE}")
e(f"s_cmp_lg_u32 s{S_T1}, 0")
e("s_cbranch_scc1 L_nocnt")
e("s_mov_b64 exec, 1")
e(f"buffer_store_dword v{V_ZERO}, v{V_ZERO}, {sr(SRD_WS,4)}, s{S_T0} offen sc1")
e("s_mov_b64 exec, -1")
e("L_nocnt:")
e(f"s_add_u32 s{S_CB}, s28, s{S_T0}")
e(f"s_addc_u32 s{S_CB+1}, s29, 0")
e(f"s_lshl_b32 s{S_T0}, s{S_HEAD}, 2")
e(f"s_add_u32 s{S_DB}, s26, s{S_T0}")
e(f"s_addc_u32 s{S_DB+1}, s27, 0")
srd(SRD_X, 4, 5, 1280)
e(f"v_lshlrev_b32 v{T[3]}, 2, v{V_LANE}")
for j in range(5):
    e(f"buffer_load_dword v{XR+j}, v{T[3]}, {sr(SRD_X,4)}, 0 offen offset:{j*256}")
c("weight slice loads")
e(f"s_cmp_ge_u32 s{S_WAVE}, 6")
e("s_cbranch_scc1 L_w1")
srd(SRD_W, 10, 11, 640 * 12288)
e(f"s_cmp_ge_u32 s{S_WAVE}, 3")
e(f"s_cselect_b32 s{S_T1}, 1, 0")
e(f"s_mul_i32 s{S_T2}, s{S_T1}, 3")
e(f"s_sub_u32 s{S_T2}, s{S_WAVE}, s{S_T2}")
e(f"s_mul_i32 s{S_T0}, s{S_SPLIT}, 80")
e(f"s_mul_i32 s{S_NEW}, s{S_T1}, 40")
e(f"s_add_u32 s{S_T0}, s{S_T0}, s{S_NEW}")
e(f"s_mul_i32 s{S_NEW}, s{S_T0}, 12288")
e(f"s_mul_i32 s{S_AT}, s{S_HEAD}, 384")
e(f"s_add_u32 s{S_NEW}, s{S_NEW}, s{S_AT}")
e(f"s_lshl_b32 s{S_AT}, s{S_T2}, 7")
e(f"s_add_u32 s{S_NEW}, s{S_NEW}, s{S_AT}")
e(f"v_mul_u32_u24 v{T[4]}, 12288, v{T[0]}")
e(f"v_add_u32 v{T[4]}, v{T[4]}, v{T[1]}")
for k in range(5):
    e(f"buffer_load_dwordx4 {vr(WR+4*k,4)}, v{T[4]}, {sr(SRD_W,4)}, s{S_NEW} offen nt")
    if k < 4:
        e(f"s_add_u32 s{S_NEW}, s{S_NEW}, {8*12288}")
e(f"v_add_u32 v{T[5]}, s{S_T0}, v{T[0]}")
e("s_branch L_wdone")
e("L_w1:")
srd(SRD_W, 16, 17, 640 * 3072)
e(f"v_mul_u32_u24 v{T[5]}, 10923, v{V_LANE}")
e(f"v_lshrrev_b32 v{T[5]}, 16, v{T[5]}")
e(f"v_mul_u32_u24 v{T[6]}, 6, v{T[5]}")
e(f"v_sub_u32 v{T[6]}, v{V_LANE}, v{T[6]}")
e(f"v_mul_u32_u24 v{T[4]}, 3072, v{T[5]}")
e(f"v_lshl_add_u32 v{T[4]}, v{T[6]}, 4, v{T[4]}")
e(f"s_sub_u32 s{S_T1}, s{S_WAVE}, 6")
e(f"s_mul_i32 s{S_T0}, s{S_SPLIT}, 80")
e(f"s_mul_i32 s{S_NEW}, s{S_T1}, 40")
e(f"s_add_u32 s{S_T0}, s{S_T0}, s{S_NEW}")
e(f"s_mul_i32 s{S_NEW}, s{S_T0}, 3072")
e(f"s_mul_i32 s{S_AT}, s{S_HEAD}, 96")
e(f"s_add_u32 s{S_NEW}, s{S_NEW}, s{S_AT}")
for k in range(5):
    e(f"buffer_load_dwordx4 {vr(WR+4*k,4)}, v{T[4]}, {sr(SRD_W,4)}, s{S_NEW} offen nt")
    if k < 3:
        e(f"s_add_u32 s{S_NEW}, s{S_NEW}, {10*3072}")
e(f"v_mov_b32 v{V_M}, v{T[5]}")
e(f"v_add_u32 v{T[5]}, s{S_T0}, v{T[5]}")
e("L_wdone:")
srd(SRD_B1, 18, 19, 3072)
e(f"v_subrev_u32 v{T[4]}, 192, v0")
e(f"v_lshlrev_b32 v{T[4]}, 1, v{T[4]}")
e(f"s_mul_i32 s{S_AT}, s{S_HEAD}, 96")
e(f"buffer_load_ushort v{V_B1}, v{T[4]}, {sr(SRD_B1,4)}, s{S_AT} offen")
e(f"s_mul_i32 s{S_NEW}, s{S_HEAD}, 12582912")
srd_off(SRD_K, 6, 7, S_NEW, 12582912)
srd_off(SRD_V, 8, 9, S_NEW, 12582912)
srd(SRD_WO, 12, 13, 6144 * 1280)
srd(SRD_W2, 20, 21, 1536 * 1280)
srd(SRD_B2, 22, 23, 1280)
srd(SRD_OUT, 24, 25, 1280)
srd(SRD_DBG, 26, 27, 128)
e("s_barrier")
c("stage 1 prefetch: K0")
tk2off(S_NEW, S_TK[0])
load_kv(KB[0], SRD_K, S_NEW)
if STAMP:
    e("s_mov_b32 s4, s98")
    NST[0] = 1
c("---- layernorm ----")
e("s_waitcnt vmcnt(12)")
for j in range(5):
    e(f"v_lshlrev_b32 v{XF+2*j}, 16, v{XR+j}")
    e(f"v_and_b32 v{XF+2*j+1}, s{S_MASKHI}, v{XR+j}")
A0, A1, A2, A3, A4 = ACC, ACC + 1, ACC + 2, ACC + 3, ACC + 4
e(f"v_add_f32 v{A0}, v{XF}, v{XF+1}")
for j in range(2, 10):
    e(f"v_add_f32 v{A0}, v{A0}, v{XF+j}")
wave_allreduce("v_add_f32", A0, A1, [1, 2, 4, 8, 16, 32])
e(f"v_mul_f32 v{A0}, 0x3acccccd, v{A0}")
e(f"v_mov_b32 v{A1}, 0")
for j in range(10):
    e(f"v_sub_f32 v{A2}, v{XF+j}, v{A0}")
    e(f"v_fmac_f32 v{A1}, v{A2}, v{A2}")
wave_allreduce("v_add_f32", A1, A2, [1, 2, 4, 8, 16, 32])
e(f"v_mul_f32 v{A1}, 0x3acccccd, v{A1}")
bf16_round([A0, A1], A2)
e(f"v_add_f32 v{A1}, 0x3727c5ac, v{A1}")
bf16_round([A1], A2)
e(f"v_sqrt_f32 v{A1}, v{A1}")
nop(0)
bf16_round([A1], A2)
e(f"v_rcp_f32 v{A3}, v{A1}")
for j in range(10):
    e(f"v_sub_f32 v{XF+j}, v{XF+j}, v{A0}")
bf16_round([XF + j for j in range(10)], A2)
for j in range(10):
    e(f"v_mul_f32 v{A2}, v{XF+j}, v{A3}")
    e(f"v_fma_f32 v{A4}, -v{A2}, v{A1}, v{XF+j}")
    e(f"v_fma_f32 v{XF+j}, v{A4}, v{A3}, v{A2}")
bf16_round([XF + j for j in range(10)], A2)
e(f"s_mul_i32 s{S_NEW}, s{S_WAVE}, 2560")
e(f"v_lshlrev_b32 v{A2}, 3, v{V_LANE}")
e(f"v_add_u32 v{A2}, s{S_NEW}, v{A2}")
for j in range(5):
    e(f"ds_write_b64 v{A2}, {vr(XF+2*j,2)} offset:{LDS_XN + j*512}")
e(f"v_lshlrev_b32 v{T[5]}, 2, v{T[5]}")
e(f"v_add_u32 v{T[5]}, s{S_NEW}, v{T[5]}")
e("s_waitcnt lgkmcnt(0)")
e(f"s_cmp_ge_u32 s{S_WAVE}, 6")
e("s_cbranch_scc1 L_p_w1")
def products(n, stride):
    for k in range(n):
        e(f"ds_read_b32 v{XN+k}, v{T[5]} offset:{LDS_XN + stride*k}")
    for k in range(n):
        e(f"s_waitcnt vmcnt({11-k}) lgkmcnt({n-1-k})")
        for j in range(4):
            w = WR + 4 * k + j
            e(f"v_lshlrev_b32 v{U[0]}, 16, v{w}")
            e(f"v_and_b32 v{U[1]}, s{S_MASKHI}, v{w}")
            op = "v_mul_f32" if k == 0 else "v_fmac_f32"
            e(f"{op} v{ACC+2*j}, v{XN+k}, v{U[0]}")
            e(f"{op} v{ACC+2*j+1}, v{XN+k}, v{U[1]}")
products(5, 32)
reduce_hi([ACC + i for i in range(8)], (8,))
e(f"s_mul_i32 s{S_NEW}, s{S_T1}, 768")
e(f"s_lshl_b32 s{S_AT}, s{S_T2}, 8")
e(f"s_add_u32 s{S_NEW}, s{S_NEW}, s{S_AT}")
e(f"v_lshlrev_b32 v{T[4]}, 1, v{T[1]}")
e(f"v_lshrrev_b32 v{T[6]}, 4, v{V_LANE}")
e(f"v_lshl_add_u32 v{T[4]}, v{T[6]}, 3, v{T[4]}")
e(f"v_add_u32 v{T[4]}, s{S_NEW}, v{T[4]}")
e(f"ds_write_b64 v{T[4]}, {vr(ACC,2)} offset:{LDS_QPART}")
e("s_branch L_p_done")
e("L_p_w1:")
products(4, 40)
e(f"s_mul_i32 s{S_NEW}, s{S_T1}, 1920")
e(f"v_mul_u32_u24 v{T[4]}, 192, v{V_M}")
e(f"v_lshl_add_u32 v{T[4]}, v{T[6]}, 5, v{T[4]}")
e(f"v_add_u32 v{T[4]}, s{S_NEW}, v{T[4]}")
e(f"v_cmp_gt_u32 vcc, 60, v{V_LANE}")
e(f"s_and_saveexec_b64 {sr(S_EXEC,2)}, vcc")
e(f"ds_write_b128 v{T[4]}, {vr(ACC,4)} offset:{LDS_HPART}")
e(f"ds_write_b128 v{T[4]}, {vr(ACC+4,4)} offset:{LDS_HPART+16}")
e("s_mov_b64 exec, -1")
e("L_p_done:")
e("s_waitcnt lgkmcnt(0)")
e("s_barrier")
c("publish q/h partials")
e(f"v_lshlrev_b32 v{T[4]}, 2, v0")
e(f"s_lshl_b32 s{S_NEW}, s2, 10")
e(f"s_add_u32 s{S_NEW}, s{S_NEW}, {WS_QP}")
e(f"s_cmp_ge_u32 s{S_WAVE}, 4")
e("s_cbranch_scc1 L_pub_done")
e(f"s_cmp_eq_u32 s{S_WAVE}, 3")
e("s_cbranch_scc1 L_pub_h")
e(f"ds_read_b32 v{ACC}, v{T[4]} offset:{LDS_QPART}")
e(f"ds_read_b32 v{ACC+1}, v{T[4]} offset:{LDS_QPART+768}")
e("s_waitcnt lgkmcnt(0)")
e(f"v_add_f32 v{ACC}, v{ACC}, v{ACC+1}")
e(f"buffer_store_dword v{ACC}, v{T[4]}, {sr(SRD_WS,4)}, s{S_NEW} offen sc1")
e("s_branch L_pub_done")
e("L_pub_h:")
for n in range(20):
    e(f"ds_read_b32 v{ACC+n}, v{T[4]} offset:{LDS_HPART - 768 + 192*n}")
e("s_waitcnt lgkmcnt(0)")
for st in (10, 5):
    for n in range(st):
        e(f"v_add_f32 v{ACC+n}, v{ACC+n}, v{ACC+n+st}")
for n in range(1, 5):
    e(f"v_add_f32 v{ACC}, v{ACC}, v{ACC+n}")
e(f"buffer_store_dword v{ACC}, v{T[4]}, {sr(SRD_WS,4)}, s{S_NEW} offen sc1")
e("L_pub_done:")
e("s_waitcnt vmcnt(0)")
e("s_barrier")
stamp()
e(f"s_cmp_lg_u32 s{S_WAVE}, 0")
e("s_cbranch_scc1 L_arr_skip")
e(f"s_mov_b32 s{S_AT}, 1")
e(f"s_atomic_add s{S_AT}, {sr(S_DB,2)}, 0x0 glc")
e("L_arr_skip:")
c("stage 2 prefetch: V0")
tk2off(S_NEW, S_TK[0])
load_kv(VB[0], SRD_V, S_NEW)
e(f"s_cmp_lg_u32 s{S_WAVE}, 0")
e("s_cbranch_scc1 L_arr_done")
e("s_waitcnt lgkmcnt(0)")
e(f"s_add_u32 s{S_AT}, s{S_AT}, 1")
e("L_arr_poll:")
e(f"s_cmp_ge_u32 s{S_AT}, 8")
e("s_cbranch_scc1 L_arr_done")
e(f"s_mov_b32 s{S_AT}, 0")
e(f"s_atomic_add s{S_AT}, {sr(S_DB,2)}, 0x0 glc")
e("s_waitcnt lgkmcnt(0)")
e("s_branch L_arr_poll")
e("L_arr_done:")
e("s_barrier")
stamp()
e(f"s_cmp_ge_u32 s{S_WAVE}, 4")
e("s_cbranch_scc1 L_pl_skip")
e(f"s_lshl_b32 s{S_NEW}, s{S_HEAD}, 13")
e(f"s_add_u32 s{S_NEW}, s{S_NEW}, {WS_QP}")
for sp in range(8):
    e(f"buffer_load_dword v{PQ+sp}, v{T[4]}, {sr(SRD_WS,4)}, s{S_NEW} offen sc1")
    if sp < 7:
        e(f"s_add_u32 s{S_NEW}, s{S_NEW}, 1024")
e("L_pl_skip:")
e("s_barrier")
c("stage 3 prefetch: K1, V1")
tk2off(S_NEW, S_TK[1])
load_kv(KB[1], SRD_K, S_NEW)
load_kv(VB[1], SRD_V, S_NEW)
e(f"s_cmp_ge_u32 s{S_WAVE}, 4")
e("s_cbranch_scc1 L_q_done")
e("s_waitcnt vmcnt(12)")
for st in (4, 2, 1):
    for n in range(st):
        e(f"v_add_f32 v{PQ+n}, v{PQ+n}, v{PQ+n+st}")
e(f"v_cvt_pk_bf16_f32 v{T[5]}, v{PQ}, v{PQ}")
e(f"s_cmp_eq_u32 s{S_WAVE}, 3")
e("s_cbranch_scc1 L_q_h")
e(f"v_lshlrev_b32 v{T[6]}, 1, v0")
e(f"ds_write_b16 v{T[6]}, v{T[5]} offset:{LDS_QFIN}")
e("s_branch L_q_done")
e("L_q_h:")
e(f"v_lshlrev_b32 v{T[5]}, 16, v{T[5]}")
e(f"v_lshlrev_b32 v{T[6]}, 16, v{V_B1}")
e(f"v_add_f32 v{T[5]}, v{T[5]}, v{T[6]}")
bf16_round([T[5]], T[6])
e(f"v_mul_f32 v{T[6]}, v{T[5]}, v{T[5]}")
e(f"v_mov_b32 v{T[2]}, 1.0")
e(f"v_fmac_f32 v{T[2]}, 0x3d372713, v{T[6]}")
e(f"v_mul_f32 v{T[6]}, v{T[5]}, v{T[2]}")
e(f"v_mul_f32 v{T[6]}, {f2h(-2.0*math.sqrt(2.0/math.pi)*math.log2(math.e))}, v{T[6]}")
e(f"v_exp_f32 v{T[6]}, v{T[6]}")
nop(0)
e(f"v_add_f32 v{T[6]}, 1.0, v{T[6]}")
e(f"v_rcp_f32 v{T[6]}, v{T[6]}")
nop(0)
e(f"v_mul_f32 v{T[5]}, v{T[5]}, v{T[6]}")
bf16_round([T[5]], T[6])
e(f"ds_write_b32 v{T[4]}, v{T[5]} offset:{LDS_HFIN - 768}")
e("L_q_done:")
e("s_waitcnt lgkmcnt(0)")
e("s_barrier")
for t in range(3):
    e(f"ds_read_b128 {vr(Q+4*t,4)}, v{T[1]} offset:{LDS_QFIN + t*128}")
for a in range(24):
    e(f"v_mov_b32 v{ACC+a}, 0")
e(f"v_mov_b32 v{V_M}, 0xff800000")
e(f"v_mov_b32 v{V_L}, 0")
e("s_setprio 0")
e("s_waitcnt lgkmcnt(0)")
stamp()

def batch(b):
    kb, vb = KB[b], VB[b]
    e(f"s_cmp_ge_u32 s{S_TK[b]}, {NTK}")
    e("s_cbranch_scc1 L_done")
    e(f"s_mov_b32 s{S_AT}, 1")
    e(f"s_atomic_add s{S_AT}, {sr(S_CB,2)}, 0x0 glc")
    e("s_waitcnt vmcnt(18)")
    for r in range(12):
        for i in range(2):
            src2 = "0" if r == 0 else f"v{SC[i]}"
            e(f"v_dot2_f32_bf16 v{SC[i]}, v{kb+i*12+r}, v{Q+r}, {src2}")
    e("s_waitcnt lgkmcnt(0)")
    e(f"s_add_u32 s{S_TK[b]}, s{S_AT}, 128")
    tk2off(S_NEW, S_TK[b])
    load_kv(kb, SRD_K, S_NEW)
    for ctrl in ("quad_perm:[1,0,3,2]", "quad_perm:[2,3,0,1]", "row_half_mirror"):
        for i in range(2):
            dpp("v_add_f32", SC[i], SC[i], SC[i], ctrl)
        nop(0)
    bf16_round(SC, T[2])
    for i in range(2):
        e(f"v_mul_f32 v{SC[i]}, s{S_SCALE}, v{SC[i]}")
    bf16_round(SC, T[2])
    for i in range(2):
        e(f"v_mul_f32 v{SC[i]}, s{S_LOG2E}, v{SC[i]}")
    e(f"v_max3_f32 v{T[2]}, v{V_M}, v{SC[0]}, v{SC[1]}")
    e(f"v_sub_f32 v{T[3]}, v{V_M}, v{T[2]}")
    for i in range(2):
        e(f"v_sub_f32 v{SC[i]}, v{SC[i]}, v{T[2]}")
    e(f"v_exp_f32 v{T[3]}, v{T[3]}")
    for i in range(2):
        e(f"v_exp_f32 v{SC[i]}, v{SC[i]}")
    e(f"v_mov_b32 v{V_M}, v{T[2]}")
    e(f"v_fma_f32 v{V_L}, v{V_L}, v{T[3]}, v{SC[0]}")
    e(f"v_add_f32 v{V_L}, v{V_L}, v{SC[1]}")
    for a in range(24):
        e(f"v_mul_f32 v{ACC+a}, v{ACC+a}, v{T[3]}")
    e("s_waitcnt vmcnt(18)")
    for i in range(2):
        p = SC[i]
        for r in range(12):
            w = vb + i * 12 + r
            ta, tb = U[(2 * r) % 6], U[(2 * r + 1) % 6]
            e(f"v_lshlrev_b32 v{ta}, 16, v{w}")
            e(f"v_and_b32 v{tb}, s{S_MASKHI}, v{w}")
            e(f"v_fmac_f32 v{ACC+2*r}, v{p}, v{ta}")
            e(f"v_fmac_f32 v{ACC+2*r+1}, v{p}, v{tb}")
    load_kv(vb, SRD_V, S_NEW)

e("L_loop:")
batch(0)
batch(1)
e("s_branch L_loop")
e("L_done:")
stamp()
c("wo / w2 row slices (registers above the K/V buffers)")
WOR = 160
W2R = WOR + 16
V_GRP, V_CH = WOR + 24, WOR + 25
e(f"v_mul_u32_u24 v{V_GRP}, 3277, v0")
e(f"v_lshrrev_b32 v{V_GRP}, 18, v{V_GRP}")
e(f"v_mul_u32_u24 v{V_CH}, 80, v{V_GRP}")
e(f"v_sub_u32 v{V_CH}, v0, v{V_CH}")
e(f"v_mul_u32_u24 v{T[4]}, 5120, v{V_GRP}")
e(f"v_lshl_add_u32 v{T[4]}, v{V_CH}, 4, v{T[4]}")
e(f"s_mul_i32 s{S_T0}, s2, {24*1280}")
for p in range(4):
    e(f"buffer_load_dwordx4 {vr(WOR+4*p,4)}, v{T[4]}, {sr(SRD_WO,4)}, s{S_T0} offen offset:{1280*p} nt")
e(f"v_mul_u32_u24 v{T[4]}, 1280, v{V_GRP}")
e(f"v_lshl_add_u32 v{T[4]}, v{V_CH}, 4, v{T[4]}")
e(f"s_mul_i32 s{S_T0}, s2, {6*1280}")
e(f"buffer_load_dwordx4 {vr(W2R,4)}, v{T[4]}, {sr(SRD_W2,4)}, s{S_T0} offen nt")
c("---- tail: wave-level combine ----")
e(f"v_mov_b32 v{T[0]}, v{V_M}")
wave_allreduce("v_max_f32", T[0], T[1], [8, 16, 32])
e(f"v_sub_f32 v{T[1]}, v{V_M}, v{T[0]}")
e(f"v_exp_f32 v{T[1]}, v{T[1]}")
nop(0)
for a in range(24):
    e(f"v_mul_f32 v{ACC+a}, v{ACC+a}, v{T[1]}")
e(f"v_mul_f32 v{T[1]}, v{V_L}, v{T[1]}")
wave_allreduce("v_add_f32", T[1], T[2], [8, 16, 32])
reduce_hi([ACC + i for i in range(24)])
e(f"s_mul_i32 s{S_T0}, s{S_WAVE}, 800")
e(f"v_and_b32 v{T[4]}, 7, v{V_LANE}")
e(f"v_mul_u32_u24 v{T[4]}, 96, v{T[4]}")
e(f"v_lshrrev_b32 v{T[5]}, 4, v{V_LANE}")
e(f"v_mul_u32_u24 v{T[6]}, 24, v{T[5]}")
e(f"v_add3_u32 v{T[4]}, v{T[4]}, v{T[6]}, s{S_T0}")
for i in range(3):
    e(f"ds_write_b64 v{T[4]}, {vr(ACC+2*i,2)} offset:{LDS_PART + i*8}")
e(f"s_lshl_b32 s{S_T0}, s{S_WAVE}, 3")
e(f"v_mov_b32 v{T[5]}, s{S_T0}")
e(f"ds_write_b64 v{T[5]}, {vr(T[0],2)} offset:{LDS_ML}")
e("s_waitcnt lgkmcnt(0)")
e("s_barrier")
stamp()
e(f"s_cmp_ge_u32 s{S_WAVE}, 3")
e("s_cbranch_scc1 L_join1")
ML = ACC
for i in range(4):
    e(f"ds_read_b128 {vr(ML+4*i,4)}, v{V_ZERO} offset:{LDS_ML + 16*i}")
e(f"v_lshlrev_b32 v{T[4]}, 2, v0")
OP = 28
for w in range(8):
    e(f"ds_read_b32 v{OP+w}, v{T[4]} offset:{LDS_PART + w*800}")
e(f"v_mul_u32_u24 v{T[5]}, 2731, v0")
e(f"v_lshrrev_b32 v{T[5]}, 16, v{T[5]}")
e(f"v_mul_u32_u24 v{T[6]}, 24, v{T[5]}")
e(f"v_sub_u32 v{T[6]}, v0, v{T[6]}")
e(f"v_lshrrev_b32 v{T[2]}, 3, v{T[6]}")
e(f"v_lshlrev_b32 v{T[2]}, 6, v{T[2]}")
e(f"v_and_b32 v{T[6]}, 7, v{T[6]}")
e(f"v_lshlrev_b32 v{T[5]}, 3, v{T[5]}")
e(f"v_add3_u32 v{T[2]}, v{T[2]}, v{T[5]}, v{T[6]}")
e(f"v_lshlrev_b32 v{T[2]}, 2, v{T[2]}")
e("s_waitcnt lgkmcnt(0)")
e(f"v_max3_f32 v{T[0]}, v{ML}, v{ML+2}, v{ML+4}")
e(f"v_max3_f32 v{T[0]}, v{T[0]}, v{ML+6}, v{ML+8}")
e(f"v_max3_f32 v{T[0]}, v{T[0]}, v{ML+10}, v{ML+12}")
e(f"v_max_f32 v{T[0]}, v{T[0]}, v{ML+14}")
for w in range(8):
    e(f"v_sub_f32 v{ML+2*w}, v{ML+2*w}, v{T[0]}")
for w in range(8):
    e(f"v_exp_f32 v{ML+2*w}, v{ML+2*w}")
nop(0)
e(f"v_mul_f32 v{T[1]}, v{ML}, v{ML+1}")
e(f"v_mul_f32 v{T[3]}, v{ML}, v{OP}")
for w in range(1, 8):
    e(f"v_fmac_f32 v{T[1]}, v{ML+2*w}, v{ML+2*w+1}")
    e(f"v_fmac_f32 v{T[3]}, v{ML+2*w}, v{OP+w}")
e(f"s_lshl_b32 s{S_T0}, s2, 10")
e(f"s_add_u32 s{S_T0}, s{S_T0}, {WS_P}")
e(f"v_min_u32 v{T[3]}, -2, v{T[3]}")
e(f"v_min_u32 v{T[0]}, -2, v{T[0]}")
e(f"v_min_u32 v{T[1]}, -2, v{T[1]}")
e(f"buffer_store_dword v{T[3]}, v{T[2]}, {sr(SRD_WS,4)}, s{S_T0} offen sc1")
e(f"s_cmp_eq_u32 s{S_WAVE}, 1")
e("s_cbranch_scc1 L_dbgchk")
e(f"s_cmp_lg_u32 s{S_WAVE}, 0")
e("s_cbranch_scc1 L_join1")
e("s_mov_b64 exec, 1")
e(f"buffer_store_dwordx2 {vr(T[0],2)}, v{V_ZERO}, {sr(SRD_WS,4)}, s{S_T0} offen offset:768 sc1")
e("s_mov_b64 exec, -1")
c("wave 0 polls the 8 partials of this head")
e(f"s_lshl_b32 s{S_T0}, s{S_HEAD}, 13")
e(f"s_add_u32 s{S_T0}, s{S_T0}, {WS_P}")
e(f"v_min_u32 v{T[4]}, 23, v0")
e(f"s_mul_i32 s{S_T1}, s{S_SPLIT}, 24")
e(f"v_add_u32 v{T[4]}, s{S_T1}, v{T[4]}")
e(f"v_lshlrev_b32 v{T[4]}, 2, v{T[4]}")
PO = 192
PM = 200
e("L_poll1:")
e(f"s_mov_b32 s{S_T1}, s{S_T0}")
for sp in range(8):
    e(f"buffer_load_dword v{PO+sp}, v{T[4]}, {sr(SRD_WS,4)}, s{S_T1} offen sc1")
    e(f"buffer_load_dwordx2 {vr(PM+2*sp,2)}, v{V_ZERO}, {sr(SRD_WS,4)}, s{S_T1} offen offset:768 sc1")
    if sp < 7:
        e(f"s_add_u32 s{S_T1}, s{S_T1}, 1024")
e("s_waitcnt vmcnt(0)")
e(f"v_max3_u32 v{T[0]}, v{PO}, v{PO+1}, v{PO+2}")
for k in range(3, 23, 2):
    e(f"v_max3_u32 v{T[0]}, v{T[0]}, v{PO+k}, v{PO+k+1}")
e(f"v_max_u32 v{T[0]}, v{T[0]}, v{PO+23}")
e(f"v_cmp_eq_u32 vcc, -1, v{T[0]}")
nop(4)
e("s_cbranch_vccz L_poll1_done")
e("s_sleep 1")
e("s_branch L_poll1")
e("L_poll1_done:")
e(f"v_max3_f32 v{T[0]}, v{PM}, v{PM+2}, v{PM+4}")
e(f"v_max3_f32 v{T[0]}, v{T[0]}, v{PM+6}, v{PM+8}")
e(f"v_max3_f32 v{T[0]}, v{T[0]}, v{PM+10}, v{PM+12}")
e(f"v_max_f32 v{T[0]}, v{T[0]}, v{PM+14}")
for sp in range(8):
    e(f"v_sub_f32 v{PM+2*sp}, v{PM+2*sp}, v{T[0]}")
for sp in range(8):
    e(f"v_exp_f32 v{PM+2*sp}, v{PM+2*sp}")
nop(0)
e(f"v_mul_f32 v{T[1]}, v{PM}, v{PM+1}")
e(f"v_mul_f32 v{T[2]}, v{PM}, v{PO}")
for sp in range(1, 8):
    e(f"v_fmac_f32 v{T[1]}, v{PM+2*sp}, v{PM+2*sp+1}")
    e(f"v_fmac_f32 v{T[2]}, v{PM+2*sp}, v{PO+sp}")
e(f"v_rcp_f32 v{T[3]}, v{T[1]}")
nop(0)
e(f"v_mul_f32 v{T[5]}, v{T[2]}, v{T[3]}")
e(f"v_fma_f32 v{T[6]}, -v{T[5]}, v{T[1]}, v{T[2]}")
e(f"v_fma_f32 v{T[5]}, v{T[6]}, v{T[3]}, v{T[5]}")
bf16_round([T[5]], T[6])
e(f"v_lshlrev_b32 v{T[4]}, 2, v0")
e(f"ds_write_b32 v{T[4]}, v{T[5]} offset:{LDS_O}")
e("s_branch L_join1")
e("L_dbgchk:")
c("final reducers: make sure every workgroup has cleared its hand-off slots (all arrival counters == 8)")
e("s_cmp_ge_u32 s2, 40")
e("s_cbranch_scc1 L_join1")
e(f"v_and_b32 v{T[6]}, 31, v0")
e(f"v_lshlrev_b32 v{T[6]}, 2, v{T[6]}")
e("L_dbgpoll:")
e(f"buffer_load_dword v{PO}, v{T[6]}, {sr(SRD_DBG,4)}, 0 offen sc1")
e("s_waitcnt vmcnt(0)")
e(f"v_cmp_ne_u32 vcc, 8, v{PO}")
nop(4)
e("s_cbranch_vccz L_join1")
e("s_sleep 1")
e("s_branch L_dbgpoll")
e("L_join1:")
e("s_waitcnt vmcnt(0) lgkmcnt(0)")
e("s_barrier")
stamp()
c("y part = o[24 rows] @ wo rows ; z part = h[6] @ w2 rows")
OV = 64
YY = 72
HR = 70
e(f"v_lshlrev_b32 v{T[4]}, 4, v{V_GRP}")
e(f"ds_read_b128 {vr(OV,4)}, v{T[4]} offset:{LDS_O}")
e(f"s_mul_i32 s{S_T0}, s{S_SPLIT}, 24")
e(f"v_lshl_add_u32 v{T[4]}, v{V_GRP}, 2, s{S_T0}")
e(f"ds_read_b32 v{HR}, v{T[4]} offset:{LDS_HFIN}")
e("s_waitcnt lgkmcnt(0)")
for j in range(4):
    w = W2R + j
    e(f"v_lshlrev_b32 v{U[0]}, 16, v{w}")
    e(f"v_and_b32 v{U[1]}, s{S_MASKHI}, v{w}")
    e(f"v_mul_f32 v{YY+8+2*j}, v{HR}, v{U[0]}")
    e(f"v_mul_f32 v{YY+8+2*j+1}, v{HR}, v{U[1]}")
for p in range(4):
    for j in range(4):
        w = WOR + 4 * p + j
        e(f"v_lshlrev_b32 v{U[0]}, 16, v{w}")
        e(f"v_and_b32 v{U[1]}, s{S_MASKHI}, v{w}")
        op = "v_mul_f32" if p == 0 else "v_fmac_f32"
        e(f"{op} v{YY+2*j}, v{OV+p}, v{U[0]}")
        e(f"{op} v{YY+2*j+1}, v{OV+p}, v{U[1]}")
e(f"v_mul_u32_u24 v{T[2]}, 2560, v{V_GRP}")
e(f"v_lshl_add_u32 v{T[2]}, v{V_CH}, 5, v{T[2]}")
e(f"v_cmp_gt_u32 vcc, 480, v0")
e(f"s_and_saveexec_b64 {sr(S_EXEC,2)}, vcc")
e(f"ds_write_b128 v{T[2]}, {vr(YY,4)} offset:{LDS_Y}")
e(f"ds_write_b128 v{T[2]}, {vr(YY+4,4)} offset:{LDS_Y+16}")
e(f"ds_write_b128 v{T[2]}, {vr(YY+8,4)} offset:{LDS_Y+15360}")
e(f"ds_write_b128 v{T[2]}, {vr(YY+12,4)} offset:{LDS_Y+15360+16}")
e("s_mov_b64 exec, -1")
e("s_waitcnt lgkmcnt(0)")
e("s_barrier")
e(f"s_cmp_ge_u32 s{S_WAVE}, 5")
e("s_cbranch_scc1 L_pub2_done")
e(f"v_cmp_le_u32 vcc, 160, v0")
e(f"v_mov_b32 v{T[3]}, 0")
e(f"v_mov_b32 v{T[5]}, {15360-2560}")
e(f"v_cndmask_b32 v{T[4]}, v{T[3]}, v{T[5]}, vcc")
e(f"v_lshl_add_u32 v{T[4]}, v0, 4, v{T[4]}")
for g in range(6):
    e(f"ds_read_b128 {vr(YY+4*g,4)}, v{T[4]} offset:{LDS_Y + 2560*g}")
e(f"v_mov_b32 v{T[5]}, {WS_Z-WS_Y-2560}")
e(f"v_cndmask_b32 v{T[2]}, v{T[3]}, v{T[5]}, vcc")
e(f"v_lshl_add_u32 v{T[2]}, v0, 4, v{T[2]}")
e(f"s_mul_i32 s{S_T0}, s2, 2560")
e(f"s_add_u32 s{S_T0}, s{S_T0}, {WS_Y}")
e("s_waitcnt lgkmcnt(0)")
for g in range(1, 6):
    for j in range(4):
        e(f"v_add_f32 v{YY+j}, v{YY+j}, v{YY+4*g+j}")
for j in range(4):
    e(f"v_min_u32 v{YY+j}, -2, v{YY+j}")
e(f"buffer_store_dwordx4 {vr(YY,4)}, v{T[2]}, {sr(SRD_WS,4)}, s{S_T0} offen sc1")
e("L_pub2_done:")
def stamp_store():
    if STAMP:
        for i in range(8):
            e(f"v_mov_b32 v{40+i}, s{4+2*i}")
        e(f"s_lshl_b32 s{S_T0}, s2, 3")
        e(f"s_add_u32 s{S_T0}, s{S_T0}, s{S_WAVE}")
        e(f"s_lshl_b32 s{S_T0}, s{S_T0}, 5")
        e(f"s_add_u32 s{S_T0}, s{S_T0}, {4<<20}")
        e(f"buffer_store_dwordx4 v[40:43], v{V_ZERO}, {sr(SRD_WS,4)}, s{S_T0} offen")
        e(f"buffer_store_dwordx4 v[44:47], v{V_ZERO}, {sr(SRD_WS,4)}, s{S_T0} offen offset:16")
if STAMP:
    e("s_mov_b32 s18, 0")
stamp_store()
c("final reducers: wg<40 -> columns wg*16 .. +16")
e("s_cmp_ge_u32 s2, 40")
e("s_cbranch_scc1 L_exit")
e(f"v_lshrrev_b32 v{T[2]}, 3, v0")
e(f"v_mul_u32_u24 v{T[2]}, 2560, v{T[2]}")
e(f"v_bfe_u32 v{T[3]}, v0, 2, 1")
e(f"v_mul_u32_u24 v{T[3]}, {WS_Z-WS_Y}, v{T[3]}")
e(f"v_and_b32 v{T[4]}, 3, v0")
e(f"v_lshlrev_b32 v{T[4]}, 4, v{T[4]}")
e(f"v_add3_u32 v{T[2]}, v{T[2]}, v{T[3]}, v{T[4]}")
e(f"s_lshl_b32 s{S_T0}, s2, 6")
e(f"s_lshl_b32 s{S_NEW}, s2, 5")
e(f"s_add_u32 s{S_T0}, s{S_T0}, {WS_Y}")
e(f"v_lshlrev_b32 v{T[5]}, 1, v0")
FX = 100
e(f"buffer_load_ushort v{FX}, v{T[5]}, {sr(SRD_X,4)}, s{S_NEW} offen")
e(f"buffer_load_ushort v{FX+1}, v{T[5]}, {sr(SRD_B2,4)}, s{S_NEW} offen")
e("L_poll2:")
e(f"s_mov_b32 s{S_T1}, s{S_T0}")
for i in range(4):
    e(f"buffer_load_dwordx4 {vr(OV+4*i,4)}, v{T[2]}, {sr(SRD_WS,4)}, s{S_T1} offen sc1")
    if i < 3:
        e(f"s_add_u32 s{S_T1}, s{S_T1}, {64*2560}")
e("s_waitcnt vmcnt(0)")
e(f"v_max3_u32 v{T[0]}, v{OV}, v{OV+1}, v{OV+2}")
for k in range(3, 15, 2):
    e(f"v_max3_u32 v{T[0]}, v{T[0]}, v{OV+k}, v{OV+k+1}")
e(f"v_max_u32 v{T[0]}, v{T[0]}, v{OV+15}")
e(f"v_cmp_eq_u32 vcc, -1, v{T[0]}")
nop(4)
e("s_cbranch_vccz L_poll2_done")
e("s_sleep 1")
e("s_branch L_poll2")
e("L_poll2_done:")
for i in range(1, 4):
    for j in range(4):
        e(f"v_add_f32 v{OV+j}, v{OV+j}, v{OV+4*i+j}")
reduce_hi([OV + i for i in range(4)], (8,))
e(f"v_and_b32 v{T[3]}, 7, v0")
e(f"v_lshlrev_b32 v{T[3]}, 4, v{T[3]}")
e(f"v_lshrrev_b32 v{T[4]}, 4, v{V_LANE}")
e(f"v_lshl_add_u32 v{T[3]}, v{T[4]}, 2, v{T[3]}")
e(f"s_lshl_b32 s{S_T1}, s{S_WAVE}, 7")
e(f"v_add_u32 v{T[3]}, s{S_T1}, v{T[3]}")
e(f"ds_write_b32 v{T[3]}, v{OV}")
e("s_waitcnt lgkmcnt(0)")
e("s_barrier")
stamp()
stamp_store()
e(f"v_cmp_gt_u32 vcc, 16, v0")
e(f"s_and_saveexec_b64 {sr(S_EXEC,2)}, vcc")
e("s_cbranch_execz L_exit")
e(f"v_lshlrev_b32 v{T[3]}, 2, v0")
for w in range(8):
    e(f"ds_read_b32 v{OV+w}, v{T[3]} offset:{128*w}")
    e(f"ds_read_b32 v{OV+8+w}, v{T[3]} offset:{128*w+64}")
e("s_waitcnt lgkmcnt(0)")
for st in (4, 2, 1):
    for w in range(st):
        e(f"v_add_f32 v{OV+w}, v{OV+w}, v{OV+w+st}")
        e(f"v_add_f32 v{OV+8+w}, v{OV+8+w}, v{OV+8+w+st}")
ZZ = OV + 8
bf16_round([OV, ZZ], T[0])
e(f"v_lshlrev_b32 v{FX+1}, 16, v{FX+1}")
e(f"v_lshlrev_b32 v{FX}, 16, v{FX}")
e(f"v_add_f32 v{ZZ}, v{ZZ}, v{FX+1}")
bf16_round([ZZ], T[0])
e(f"v_mul_f32 v{ZZ+1}, {f2h(-math.log2(math.e))}, v{ZZ}")
e(f"v_exp_f32 v{ZZ+1}, v{ZZ+1}")
nop(0)
e(f"v_add_f32 v{ZZ+1}, 1.0, v{ZZ+1}")
e(f"v_rcp_f32 v{ZZ+1}, v{ZZ+1}")
nop(0)
e(f"v_mul_f32 v{ZZ}, v{ZZ}, v{ZZ+1}")
bf16_round([ZZ], T[0])
e(f"v_mul_f32 v{OV}, v{OV}, v{ZZ}")
bf16_round([OV], T[0])
e(f"v_add_f32 v{OV}, v{OV}, v{FX}")
e(f"v_cvt_pk_bf16_f32 v{OV}, v{OV}, v{OV}")
e(f"buffer_store_short v{OV}, v{T[5]}, {sr(SRD_OUT,4)}, s{S_NEW} offen")
e("L_exit:")
e("s_endpgm")
L.append(f"""
.section .rodata,"a"
.p2align 6
.amdhsa_kernel {KN}
  .amdhsa_next_free_vgpr 256
  .amdhsa_next_free_sgpr 102
  .amdhsa_accum_offset 256
  .amdhsa_group_segment_fixed_size 0
  .amdhsa_kernarg_size 104
  .amdhsa_user_sgpr_count 2
  .amdhsa_user_sgpr_kernarg_segment_ptr 1
  .amdhsa_system_sgpr_workgroup_id_x 1
  .amdhsa_float_denorm_mode_32 3
.end_amdhsa_kernel
""")
open(OUT, "w").write("\n".join(L) + "\n")
print("wrote", OUT, len(L), "lines")
```
